```python
import torch

def _softmax(x, axis=-1):
    return torch.softmax(x, dim=axis)
def _gelu(x):
    return torch.nn.functional.gelu(x, approximate="tanh")
def _silu(x):
    return torch.nn.functional.silu(x)
def _sigmoid(x):
    return torch.sigmoid(x)
def _layernorm(x, axis=-1, eps=1e-5):
    m = x.mean(dim=axis, keepdim=True)
    v = x.var(dim=axis, keepdim=True, unbiased=False)
    return (x - m) / torch.sqrt(v + eps)
def _scatter_add(tgt, idx, src, axis=0):
    return tgt.clone().index_add_(axis, idx, src)
def _segment_sum(src, seg, n):
    out = torch.zeros((n,) + src.shape[1:], dtype=src.dtype)
    return out.index_add_(0, seg, src)
def _pad(x, pw):
    flat = tuple(v for pair in reversed(pw) for v in pair)
    return torch.nn.functional.pad(x, flat)

kernel_name = 'gated_mix__grouped_kv_mqa__dense_activation_relu__prompt'

def setup_inputs():

    _w = (lambda a: (lambda t: t.to(torch.bfloat16) if t.is_floating_point() else t)(torch.as_tensor(a)))
    def _A_setup():
        B, S, D, H = 1, 2048, 576, 32
        Dh = D // H
        return {
            "x": _w((lambda *s: torch.randn(*s, dtype=torch.bfloat16) * 0.05)(B, S, D)),
            "wq": _w((lambda *s: torch.randn(*s, dtype=torch.bfloat16) * 1.6)(D, H * Dh)),
            "wk": _w((lambda *s: torch.randn(*s, dtype=torch.bfloat16) * 1.6)(D, Dh)),
            "wv": _w((lambda *s: torch.randn(*s, dtype=torch.bfloat16) * 0.2)(D, Dh)),
            "wo": _w((lambda *s: torch.randn(*s, dtype=torch.bfloat16) * 0.2)(H * Dh, D)),
        }
    _A_in = _A_setup()

    def _B_setup():
        B, S, D, Dff = 1, 2048, 576, 4608
        return {
            "x": _w((lambda *s: torch.randn(*s, dtype=torch.bfloat16) * 0.05)(B, S, D)),
            "w1": _w((lambda *s: torch.randn(*s, dtype=torch.bfloat16) * 0.05)(D, Dff)),
            "w2": _w((lambda *s: torch.randn(*s, dtype=torch.bfloat16) * 0.05)(Dff, D)),
        }
    _B_in = _B_setup()

    return {
        "A_x": _A_in["x"],
        "A_wq": _A_in["wq"],
        "A_wk": _A_in["wk"],
        "A_wv": _A_in["wv"],
        "A_wo": _A_in["wo"],
        "B_x": _B_in["x"],
        "B_w1": _B_in["w1"],
        "B_w2": _B_in["w2"],
        "gate_w": _w((lambda *s: torch.randn(*s, dtype=torch.bfloat16) * 0.05)(576) * 16.0),
    }

def reference(A_x, A_wq, A_wk, A_wv, A_wo, B_x, B_w1, B_w2, gate_w):
    def _A_ref(x, wq, wk, wv, wo):
        B, S, D = x.shape
        H = 32
        Dh = D // H
        q = (lambda x, *d: x.permute(*d))((x @ wq).reshape(B, S, H, Dh), 0, 2, 1, 3)
        k = x @ wk
        v = x @ wv
        scores = torch.einsum("bhqd,bkd->bhqk", q, k) * (Dh ** -0.5)
        p = _softmax(scores, axis=-1)
        o = torch.einsum("bhqk,bkd->bhqd", p, v)
        return (lambda x, *d: x.permute(*d))(o, 0, 2, 1, 3).reshape(B, S, H * Dh) @ wo

    def _B_ref(x, w1, w2):
        h = torch.einsum("bsd,df->bsf", x, w1)
        zero = torch.zeros_like(h)
        h = torch.maximum(h, zero)
        return torch.einsum("bsf,fd->bsd", h, w2)

    x = A_x
    g = _sigmoid((x * gate_w).sum(-1, keepdims=True))
    a = _A_ref(x, A_wq, A_wk, A_wv, A_wo)
    b = _B_ref(x, B_w1, B_w2)
    return g * a + (1 - g) * b
```

```python
import re

class Asm:
    _n = 0
    def __init__(self):
        self.lines = []
        self.uid = 0
        Asm._n += 1
        self.pfx = f"k{Asm._n}"
    def __call__(self, s=""):
        for l in s.split("\n"):
            l = l.strip()
            if l:
                self.lines.append(l)
    def label(self, name):
        self.lines.append(name + ":")
    def newlabel(self, base):
        self.uid += 1
        return f".L{self.pfx}{base}_{self.uid}"
    def comment(self, s):
        self.lines.append("; " + s)
    def text(self):
        out = []
        for l in self.lines:
            if l.endswith(":") or l.startswith(".") and not l.startswith(".L"):
                out.append(l)
            elif l.endswith(":"):
                out.append(l)
            else:
                out.append("    " + l)
        return "\n".join(out) + "\n"

def vr(base, n=1):
    return f"v{base}" if n == 1 else f"v[{base}:{base+n-1}]"
def sr(base, n=1):
    return f"s{base}" if n == 1 else f"s[{base}:{base+n-1}]"

_REG = re.compile(r"\b([vsa])(\d+)\b|\b([vsa])\[(\d+):(\d+)\]")
def regs_of(op):
    out = set()
    for m in _REG.finditer(op):
        if m.group(1):
            out.add((m.group(1), int(m.group(2))))
        else:
            for i in range(int(m.group(4)), int(m.group(5)) + 1):
                out.add((m.group(3), i))
    if re.search(r"\bvcc\b", op): out.add(("s", "vcc"))
    if re.search(r"\bm0\b", op): out.add(("s", "m0"))
    if re.search(r"\bexec\b", op): out.add(("s", "exec"))
    return out

TRANS = ("v_exp_", "v_log_", "v_rcp_", "v_rsq_", "v_sqrt_", "v_sin_", "v_cos_")
def classify(line):
    l = line.split(";")[0].strip()
    if not l or l.endswith(":") or l.startswith("."):
        return None
    parts = l.split(None, 1)
    op = parts[0]
    ops = [x.strip() for x in parts[1].split(",")] if len(parts) > 1 else []
    d = dict(op=op, ops=ops, line=l, w=set(), r=set())
    if op.startswith("v_mfma"):
        d["cls"] = "mfma"; d["w"] = regs_of(ops[0]); d["a"] = regs_of(ops[1]); d["b"] = regs_of(ops[2]); d["c"] = regs_of(ops[3])
        d["r"] = d["a"] | d["b"] | d["c"]
        d["passes"] = 8 if "32x32" in op else 4
    elif op.startswith("v_"):
        d["cls"] = "valu"
        nd = 1
        if op.startswith("v_cmp"):
            d["w"] = regs_of(ops[0]); d["r"] = set().union(*[regs_of(o) for o in ops[1:]])
            if op.startswith("v_cmpx"): d["w"].add(("s", "exec"))
        elif op.startswith("v_permlane") and "swap" in op:
            d["w"] = regs_of(ops[0]) | regs_of(ops[1]); d["r"] = set(d["w"])
        elif op.startswith(("v_add_co", "v_sub_co", "v_addc_co", "v_subb_co")):
            d["w"] = regs_of(ops[0]) | regs_of(ops[1]); d["r"] = set().union(*[regs_of(o) for o in ops[2:]])
        else:
            d["w"] = regs_of(ops[0]); d["r"] = set().union(*[regs_of(o) for o in ops[1:]]) if len(ops) > 1 else set()
            if op.startswith(("v_fmac", "v_dot2c", "v_writelane", "v_mac")) or "UNUSED_PRESERVE" in l: d["r"] |= d["w"]
            if op.startswith("v_cndmask") and len(ops) == 3: d["r"].add(("s", "vcc"))
        d["trans"] = op.startswith(TRANS)
        d["dot"] = op.startswith("v_dot")
        d["dpp"] = "dpp" in op or "row_" in l or "quad_perm" in l
    elif op.startswith("ds_"):
        d["cls"] = "ds"
        if "read" in op or "bpermute" in op or "swizzle" in op or "permute" in op:
            d["w"] = regs_of(ops[0]); d["r"] = set().union(*[regs_of(o) for o in ops[1:]])
        else:
            d["r"] = set().union(*[regs_of(o) for o in ops])
    elif op.startswith(("buffer_", "global_")):
        d["cls"] = "vmem"
        islds = " lds" in l or "_lds_" in op
        if ("load" in op and not islds) or ("atomic" in op and "sc0" in l):
            d["w"] = regs_of(ops[0]); d["r"] = set().union(*[regs_of(o) for o in ops[1:]])
        else:
            d["r"] = set().union(*[regs_of(o) for o in ops]) if ops else set()
        if islds: d["r"].add(("s", "m0"))
        d["lds"] = islds
        d["widestore"] = ("store_dwordx4" in op or "store_dwordx3" in op)
        if d["widestore"]:
            d["data"] = regs_of(ops[0]) if op.startswith("buffer") else regs_of(ops[1])
    elif op.startswith("s_"):
        d["cls"] = "salu"
        if op in ("s_nop",):
            d["nop"] = int(ops[0], 0) + 1
        if op.startswith(("s_cmp", "s_cbranch", "s_branch", "s_waitcnt", "s_barrier", "s_nop", "s_endpgm", "s_sleep", "s_setprio", "s_bitcmp")):
            d["r"] = set().union(*[regs_of(o) for o in ops]) if ops else set()
        else:
            d["w"] = regs_of(ops[0]) if ops else set(); d["r"] = set().union(*[regs_of(o) for o in ops[1:]]) if len(ops) > 1 else set()
            if "saveexec" in op: d["w"].add(("s", "exec"))
    else:
        d["cls"] = "other"
    return d

def check_hazards(lines, name=""):
    ins = [classify(l) for l in lines]
    ins = [i for i in ins if i is not None]
    probs = []
    for i, cur in enumerate(ins):
        dist = 0
        for j in range(i - 1, max(-1, i - 40), -1):
            p = ins[j]
            need = 0; why = ""
            vw = {x for x in p["w"] if x[0] in "va"}
            sw = {x for x in p["w"] if x[0] == "s"}
            if p["cls"] == "valu":
                if cur["cls"] == "mfma" and vw & cur["r"]: need, why = 2, "VALU->MFMA"
                if p.get("trans") and cur["cls"] in ("valu",) and not cur.get("trans") and vw & cur["r"]: need, why = max(need, 1), "trans->VALU"
                if p.get("trans") and cur["cls"] in ("mfma",) and vw & cur["r"]: need, why = max(need, 2), "trans->MFMA"
                if cur["cls"] == "vmem" and sw & cur["r"] - {("s", "exec")}: need, why = max(need, 5), "VALU sgpr->VMEM"
                if cur["cls"] == "valu" and (sw - {("s", "exec")}) & cur["r"]: need, why = max(need, 2), "VALU sgpr->VALU const"
                if cur["op"].startswith(("v_readfirstlane", "v_readlane")) and vw & cur["r"]: need, why = max(need, 1), "VALU->readlane"
                if cur["op"].startswith("v_permlane") and vw & cur["r"]: need, why = max(need, 2), "VALU->permlane"
                if cur.get("dpp") and vw & cur["r"]: need, why = max(need, 2), "VALU->DPP"
                if p.get("dot") and cur["cls"] in ("valu", "mfma") and not (cur.get("dot") and cur["op"] == p["op"]) and vw & (cur["r"] | cur["w"]): need, why = max(need, 3), "dot->other"
                if ("s", "exec") in p["w"] and cur["cls"] == "mfma": need, why = max(need, 4), "exec->mfma"
                if cur["cls"] == "salu" and (sw - {("s", "exec")}) & cur["r"]: need, why = max(need, 1), "VALU sgpr->SALU (pad)"
            if p["cls"] == "mfma":
                np_ = p["passes"]
                if cur["cls"] == "mfma":
                    if p["w"] & (cur["a"] | cur["b"]): need, why = {4: 8, 8: 12}[np_], "MFMA D->A/B"
                    elif p["w"] & cur["c"] and not (p["w"] == cur["c"] and p["passes"] == cur["passes"]): need, why = {4: 6, 8: 10}[np_], "MFMA D->C partial"
                    elif p["w"] & cur["w"] and not (p["w"] == cur["c"]): need, why = {4: 6, 8: 10}[np_], "MFMA D->D WAW (no chain)"
                else:
                    if p["w"] & (cur["r"] | cur["w"]) and cur["cls"] in ("valu", "vmem", "ds"): need, why = {4: 8, 8: 12}[np_], "MFMA D->VALU/mem"
                    if cur["cls"] == "valu" and p["c"] & cur["w"]: need, why = max(need, {4: 3, 8: 7}[np_]), "MFMA C WAR"
            if p["cls"] == "salu" and ("s", "m0") in p["w"] and cur["cls"] == "vmem" and cur.get("lds"): need, why = 1, "m0->ldsdma"
            if p["cls"] == "vmem" and p.get("widestore") and cur["cls"] in ("valu",) and p["data"] & cur["w"]: need, why = 2, "wide store WAR"
            if dist < need:
                probs.append(f"{name}: {why} need {need} have {dist}: [{p['line']}] -> [{cur['line']}]")
            dist += p.get("nop", 1)
            if dist >= 20: break
    return probs
```

```python
from gen_common import *
import gen_common, copy, os
NODMA = os.environ.get('NODMA') == '1'
NOGATE = os.environ.get('NOGATE') == '1'
NOBAR = os.environ.get('NOBAR') == '1'
DBUF = os.environ.get('DBUF') == '1'

XS_BASE, XS_SLOT = 0, 16384
WE_BASE, WE_SUB = 65536, 3072
W1_HI, W1_SUB = 90112, 9216
GW_BASE = WE_BASE
LDS_A = 163840
def w1_pos_addr(p): return W1_HI + p * W1_SUB if p < 8 else (p - 8) * W1_SUB
POS_FREE0 = {8: 8, 9: 8, 10: 5, 11: 6, 12: 6, 13: 7, 14: 7}

V_LANE = 1
X0 = 112
def XF(rt, T): return X0 + (rt * 18 + T) * 4
ACC = 32
WF = 72
E = 92
HP = 92
KEEP = 108
WX = 16
QP = 24
V_W1R = [2, 3, 4]
V_W1D = 5
V_WE = 100
V_L16 = 8
V_XD = 9
V_XA = 11
V_WEA = 13
TD = 9
S_XSOFF, S_W1M0, S_H, S_HS0 = 64, 65, 66, 67
ALLC = ("w05", "w67")
GATE_N = 6

def setup_a1(a):
    t = 32
    a(f"s_mul_i32 s52, s{S_M}, {128*1152}")
    srd(a, SRD_A, S_X, 128 * 1152, add_s=52)
    a(f"v_lshlrev_b32 v{V_L16}, 4, v{V_LANE}")
    a(f"v_lshrrev_b32 v{t+1}, 4, v{V_LANE}")
    a(f"v_lshrrev_b32 v{t+2}, 3, v{V_LANE}")
    a(f"s_lshl_b32 s52, s{S_W}, 4")
    a(f"v_add_u32 v{t+2}, s52, v{t+2}")
    a(f"v_and_b32 v{t+3}, 7, v{V_LANE}")
    for ii in range(2):
        a(f"v_add_u32 v{t+4}, {4*ii}, v{t+1}")
        a(f"v_xor_b32 v{t+4}, v{t+4}, v{t+3}")
        a(f"v_lshlrev_b32 v{t+4}, 4, v{t+4}")
        a(f"v_add_u32 v{t+5}, {8*ii}, v{t+2}")
        a(f"v_mul_u32_u24 v{t+5}, 1152, v{t+5}")
        a(f"v_add_u32 v{V_XD+ii}, v{t+4}, v{t+5}")

def setup_a2(a):
    t = 32
    srd(a, SRD_B, S_W1, 576 * 9216)
    l67 = a.newlabel("s67"); lend = a.newlabel("s2e")
    for jj in range(3):
        a(f"v_mov_b32 v{V_WE+2*jj}, s{S_WQ}")
        a(f"v_mov_b32 v{V_WE+2*jj+1}, s{S_WQ+1}")
    a(f"s_cmp_lt_u32 s{S_W}, 6")
    a(f"s_cbranch_scc0 {l67}")
    a(f"s_cmp_ge_u32 s{S_W}, 3")
    a(f"s_cselect_b32 s{S_H}, 1, 0")
    a(f"s_mul_i32 s53, s{S_H}, 3")
    a(f"s_sub_u32 s53, s{S_W}, s53")
    a(f"s_mul_i32 s{S_W1M0}, s53, 3072")
    a(f"s_mul_i32 s56, s53, 192")
    a(f"s_mul_i32 s54, s{S_N}, 576")
    for aa in range(3):
        a(f"s_add_u32 s52, s56, {64*aa}")
        a(f"v_add_u32 v{t+2}, s52, v{V_LANE}")
        a(f"v_mul_u32_u24 v{t+3}, 58255, v{t+2}")
        a(f"v_lshrrev_b32 v{t+3}, 20, v{t+3}")
        a(f"v_mul_u32_u24 v{t+4}, 18, v{t+3}")
        a(f"v_sub_u32 v{t+4}, v{t+2}, v{t+4}")
        a(f"v_and_b32 v{t+5}, 3, v{t+3}")
        a(f"v_bfe_u32 v{t+6}, v{t+3}, 2, 2")
        a(f"v_lshl_add_u32 v{t+5}, v{t+6}, 3, v{t+5}")
        a(f"v_bfe_u32 v{t+6}, v{t+3}, 4, 1")
        a(f"v_lshl_add_u32 v{t+5}, v{t+6}, 2, v{t+5}")
        a(f"v_mul_u32_u24 v{t+5}, 9216, v{t+5}")
        a(f"v_lshl_add_u32 v{t+5}, v{t+4}, 4, v{t+5}")
        a(f"v_add_u32 v{V_W1D+aa}, s54, v{t+5}")
    a(f"s_branch {lend}")
    a.label(l67)
    a(f"s_sub_u32 s{S_H}, s{S_W}, 6")
    a(f"s_cmp_ge_u32 s{S_N}, 3")
    a(f"s_cselect_b32 s54, s{S_WV}, s{S_WK}")
    a(f"s_cselect_b32 s55, s{S_WV+1}, s{S_WK+1}")
    a(f"s_cmp_ge_u32 s{S_N}, 6")
    a(f"s_cselect_b32 s54, s{S_WK}, s54")
    a(f"s_cselect_b32 s55, s{S_WK+1}, s55")
    a(f"s_sub_u32 s56, s{S_N}, 3")
    a(f"s_cmp_ge_u32 s{S_N}, 3")
    a(f"s_cselect_b32 s56, s56, s{S_N}")
    a(f"s_cmp_eq_u32 s56, 1")
    a(f"s_cselect_b32 s57, 16, 0")
    a(f"s_cmp_eq_u32 s56, 2")
    a(f"s_cselect_b32 s57, 20, s57")
    a(f"s_cmp_ge_u32 s{S_N}, 6")
    a(f"s_cselect_b32 s57, 0, s57")
    a(f"s_movk_i32 s60, 36")
    a(f"s_cmp_eq_u32 s{S_N}, {GATE_N}")
    a(f"s_cselect_b32 s54, s{S_GW}, s54")
    a(f"s_cselect_b32 s55, s{S_GW+1}, s55")
    a(f"s_cselect_b32 s60, 2, s60")
    a(f"s_lshl_b32 s61, s60, 6")
    a(f"s_xor_b32 s58, s{S_H}, 1")
    a(f"s_lshl_b32 s58, s58, 5")
    a(f"s_mul_i32 s59, s{S_N}, 72")
    for jj in range(3):
        a(f"v_add_u32 v{t+2}, {64*jj}, v{V_LANE}")
        a(f"v_mul_u32_u24 v{t+3}, 43691, v{t+2}")
        a(f"v_lshrrev_b32 v{t+3}, 18, v{t+3}")
        a(f"v_mul_u32_u24 v{t+4}, 6, v{t+3}")
        a(f"v_sub_u32 v{t+4}, v{t+2}, v{t+4}")
        a(f"v_and_b32 v{t+5}, 3, v{t+3}")
        a(f"v_bfe_u32 v{t+6}, v{t+3}, 2, 2")
        a(f"v_lshl_add_u32 v{t+5}, v{t+6}, 3, v{t+5}")
        a(f"v_bfe_u32 v{t+6}, v{t+3}, 4, 1")
        a(f"v_lshl_add_u32 v{t+5}, v{t+6}, 2, v{t+5}")
        a(f"v_add_u32 v{t+5}, s58, v{t+5}")
        a(f"v_lshlrev_b32 v{t+6}, 4, v{t+4}")
        a(f"v_min_u32 v{t+6}, 56, v{t+6}")
        a(f"v_add_u32 v{t+6}, s59, v{t+6}")
        a(f"v_mul_u32_u24 v{t+7}, 1152, v{t+5}")
        a(f"v_add_u32 v{t+6}, v{t+6}, v{t+7}")
        a(f"v_mul_u32_u24 v{t+7}, s60, v{t+5}")
        a(f"v_add_u32 v{t+7}, s57, v{t+7}")
        a(f"v_cmp_eq_u32 vcc, 5, v{t+4}")
        a(f"v_mov_b32 v{t+2}, s{S_WQ}")
        a(f"v_mov_b32 v{t+3}, s54")
        a(f"v_cndmask_b32 v{V_WE+2*jj}, v{t+2}, v{t+3}, vcc")
        a(f"v_mov_b32 v{t+2}, s{S_WQ+1}")
        a(f"v_mov_b32 v{t+3}, s55")
        a(f"v_cndmask_b32 v{V_WE+2*jj+1}, v{t+2}, v{t+3}, vcc")
        a(f"v_cndmask_b32 v{t+6}, v{t+6}, v{t+7}, vcc")
        a(f"v_mov_b32 v{t+2}, {64*1152}")
        a(f"v_mov_b32 v{t+3}, s61")
        a(f"v_cndmask_b32 v{V_W1D+jj}, v{t+2}, v{t+3}, vcc")
        a(f"v_add_co_u32 v{V_WE+2*jj}, vcc, v{V_WE+2*jj}, v{t+6}")
        a("s_nop 1")
        a(f"v_addc_co_u32 v{V_WE+2*jj+1}, vcc, 0, v{V_WE+2*jj+1}, vcc")
    a.label(lend)

def setup_a3(a):
    t = 32
    srd(a, SRD_C, S_WS, WS_SPAN)
    a(f"v_and_b32 v{t}, 15, v{V_LANE}")
    a(f"v_lshrrev_b32 v{t+1}, 4, v{V_LANE}")
    a(f"v_lshrrev_b32 v{t+2}, 1, v{t}")
    a(f"s_lshl_b32 s52, s{S_RG}, 12")
    a(f"v_lshlrev_b32 v{t+3}, 7, v{t}")
    a(f"v_add_u32 v{t+3}, s52, v{t+3}")
    for kk in range(2):
        a(f"v_add_u32 v{t+4}, {4*kk}, v{t+1}")
        a(f"v_xor_b32 v{t+4}, v{t+4}, v{t+2}")
        a(f"v_lshl_add_u32 v{V_XA+kk}, v{t+4}, 4, v{t+3}")
    a(f"v_lshrrev_b32 v{t+2}, 2, v{t}")
    a(f"v_lshl_add_u32 v{t+2}, v{t+1}, 2, v{t+2}")
    a(f"v_and_b32 v{t+3}, 3, v{t}")
    a(f"v_lshlrev_b32 v{t+3}, 3, v{t+3}")
    a(f"v_mul_u32_u24 v{t+4}, 96, v{t+2}")
    a(f"v_add_u32 v{V_WEA}, v{t+4}, v{t+3}")
    a(f"s_lshl_b32 s52, s{S_CG}, 6")
    a(f"s_add_u32 s52, s52, {WE_BASE}")
    a(f"v_add_u32 v{V_WEA}, s52, v{V_WEA}")
    a(f"v_mul_u32_u24 v{t+4}, 288, v{t+2}")
    a(f"v_add_u32 v{V_W1R[2]}, v{t+4}, v{t+3}")
    a(f"s_lshl_b32 s52, s{S_CG}, 7")
    a(f"v_add_u32 v{V_W1R[2]}, s52, v{V_W1R[2]}")
    a(f"v_add_u32 v{V_W1R[0]}, {W1_HI}, v{V_W1R[2]}")
    a(f"v_add_u32 v{V_W1R[1]}, {W1_HI + 4*W1_SUB}, v{V_W1R[2]}")
    a(f"s_lshl_b32 s52, s{S_M}, 4")
    a(f"s_add_u32 s52, s52, s{S_N}")
    a(f"s_mul_i32 s52, s52, 73728")
    a(f"s_add_u32 s52, s52, {H_OFF}")
    a(f"s_lshl_b32 s53, s{S_RG}, 11")
    a(f"s_add_u32 s{S_HS0}, s52, s53")

def op_x(vm, sigma, ii):
    def f(a):
        slot = sigma % 4
        a(f"s_movk_i32 s{S_XSOFF}, {sigma*128}")
        a(f"s_lshl_b32 s52, s{S_W}, 11")
        a(f"s_add_u32 m0, s52, {XS_BASE + slot*XS_SLOT + ii*1024}")
        a("s_nop 0")
        a(f"buffer_load_dwordx4 v{V_XD+ii}, s[{SRD_A}:{SRD_A+3}], s{S_XSOFF} offen lds")
        vm.issue(("x", sigma))
    return f

def koff(q):
    ch, qq = divmod(q, 18)
    return qq * 32 * 9216 + ch * 288

def op_w(vm, qa, qb, pos, aa, cg):
    va = qa is not None and 0 <= qa < 36
    vb = qb is not None and 0 <= qb < 36
    wea = va and qa < 18 and pos.get("we", True)
    web = vb and qb < 18 and pos.get("we", True)
    def w1part(a):
        if va and vb:
            a(f"s_mul_i32 s53, s{S_H}, {koff(qb) - koff(qa)}")
            a(f"s_add_u32 s53, s53, {koff(qa)}")
            a(f"s_mul_i32 s52, s{S_H}, {w1_pos_addr(pos[qb]) - w1_pos_addr(pos[qa])}")
            a(f"s_add_u32 s52, s52, s{S_W1M0}")
            a(f"s_add_u32 m0, s52, {w1_pos_addr(pos[qa]) + aa*1024}")
            a("s_nop 0")
            a(f"buffer_load_dwordx4 v{V_W1D+aa}, s[{SRD_B}:{SRD_B+3}], s53 offen lds")
        else:
            q = qa if va else qb
            sk = a.newlabel("w1h")
            a(f"s_cmp_eq_u32 s{S_H}, {0 if va else 1}")
            a(f"s_cbranch_scc0 {sk}")
            a(f"s_mov_b32 s53, {koff(q)}")
            a(f"s_add_u32 m0, s{S_W1M0}, {w1_pos_addr(pos[q]) + aa*1024}")
            a("s_nop 0")
            a(f"buffer_load_dwordx4 v{V_W1D+aa}, s[{SRD_B}:{SRD_B+3}], s53 offen lds")
            a.label(sk)
    def wepart(a):
        def one(a, q):
            a(f"s_mov_b32 m0, {WE_BASE + (q % 8)*WE_SUB + aa*1024}")
            a("s_nop 0")
            a(f"global_load_lds_dwordx4 v[{V_WE+2*aa}:{V_WE+2*aa+1}], off")
            a(f"v_add_co_u32 v{V_WE+2*aa}, vcc, v{V_WE+2*aa}, v{V_W1D+aa}")
            a("s_nop 1")
            a(f"v_addc_co_u32 v{V_WE+2*aa+1}, vcc, 0, v{V_WE+2*aa+1}, vcc")
        if wea and web:
            l1 = a.newlabel("weh"); l2 = a.newlabel("wee")
            a(f"s_cmp_eq_u32 s{S_H}, 0")
            a(f"s_cbranch_scc0 {l1}")
            one(a, qa); a(f"s_branch {l2}")
            a.label(l1); one(a, qb); a.label(l2)
        elif wea or web:
            l2 = a.newlabel("wee")
            a(f"s_cmp_eq_u32 s{S_H}, {0 if wea else 1}")
            a(f"s_cbranch_scc0 {l2}")
            one(a, qa if wea else qb); a.label(l2)
    def f(a):
        need67 = (wea or web)
        if cg == 0:
            w1part(a)
        else:
            l67 = a.newlabel("d67"); le = a.newlabel("de")
            a(f"s_cmp_lt_u32 s{S_W}, 6")
            a(f"s_cbranch_scc0 {l67 if need67 else le}")
            w1part(a)
            if need67:
                a(f"s_branch {le}")
                a.label(l67); wepart(a)
            a.label(le)
        both_w1 = va and vb
        if both_w1: vm.issue(("w", qa, qb), ("w05",))
        else: vm.issue_maybe(("w", qa, qb), ("w05",))
        if wea and web: vm.issue(("w", qa, qb), ("w67",))
        elif wea or web: vm.issue_maybe(("w", qa, qb), ("w67",))
    return f

def wait_for(a, vm, pred, classes):
    vals = {}
    for c in classes:
        n = vm.count_after_pred(pred, c)
        if n is not None: vals[c] = min(n, 63)
    if not vals: return
    if len(classes) == 1 or (len(vals) == len(classes) and len(set(vals.values())) == 1):
        a(f"s_waitcnt vmcnt({list(vals.values())[0]})"); return
    l67 = a.newlabel("wv67"); le = a.newlabel("wve")
    a(f"s_cmp_lt_u32 s{S_W}, 6")
    a(f"s_cbranch_scc0 {l67}")
    if "w05" in vals: a(f"s_waitcnt vmcnt({vals['w05']})")
    a(f"s_branch {le}")
    a.label(l67)
    if "w67" in vals: a(f"s_waitcnt vmcnt({vals['w67']})")
    a.label(le)

def need_pred(j):
    qs = (2*j + 2, 2*j + 3)
    def p(tag):
        if tag[0] == "x": return tag[1] == j + 1
        if tag[0] == "w": return tag[1] in qs or tag[2] in qs
        return False
    return p

def schedule():
    pos = {}
    plan = {}
    for s in range(-4, 6):
        qa, qb = 2*s + 7, 2*s + 8
        for q in (qa, qb):
            if q >= 0: pos[q] = q % 8
        plan[s] = [(qa if qa >= 0 else None, qb)]
    nxt = 19
    free = []
    occ = {p: q for q, p in pos.items() if q >= 11}
    def free_time(q): return q // 2 + (0 if q % 2 == 0 else 1)
    avail = [(free_time(q), p) for p, q in {pos[q]: q for q in sorted(pos)}.items()]
    avail += [(t, p) for p, t in POS_FREE0.items()]
    for s in range(6, 17):
        plan[s] = []
        for rep in range(2):
            if nxt >= 36: break
            cand = sorted([x for x in avail if x[0] <= s])
            need = 2 if nxt + 1 < 36 else 1
            if len(cand) < need: break
            if rep == 1 and nxt > 2*s + 16: break
            pr = []
            for k in range(need):
                t, p = cand[k]; avail.remove((t, p)); pos[nxt] = p; avail.append((free_time(nxt), p)); pr.append(nxt); nxt += 1
            plan[s].append((pr[0], pr[1] if need == 2 else None))
    assert nxt == 36
    for s, prs in plan.items():
        for pr in prs:
            for q in pr:
                if q is not None: assert s < q // 2 - 1 or (q < 2), (s, q)
    return plan, pos

def w_read(q, pos, t, dst):
    p = pos[q]
    reg = V_W1R[0] if p < 4 else (V_W1R[1] if p < 8 else V_W1R[2])
    off0 = (p % 4 if p < 8 else p - 8) * W1_SUB
    return [f"ds_read_b64_tr_b16 {vr(dst + 2*u, 2)}, v{reg} offset:{off0 + u*4608 + t*32}" for u in range(2)]
def wx_read(q, c):
    return [f"ds_read_b64_tr_b16 {vr(WX + 4*c + 2*u, 2)}, v{V_WEA} offset:{(q % 8)*WE_SUB + u*1536 + c*32}" for u in range(2)]
def x_reads(sigma):
    return [f"ds_read_b128 {vr(XF(rt, 2*sigma+kk),4)}, v{V_XA+kk} offset:{XS_BASE + (sigma % 4)*XS_SLOT + rt*2048}" for kk in range(2) for rt in range(2)]

class LG:
    def __init__(self): self.ops = []
    def issue(self, a, text, tag): a(text); self.ops.append(tag)
    def wait(self, a, tags):
        idx = max((i for i, t in enumerate(self.ops) if t in tags), default=-1)
        if idx < 0: return
        n = len(self.ops) - 1 - idx
        a(f"s_waitcnt lgkmcnt({min(n, 15)})")
        self.ops = self.ops[idx + 1:] if n <= 15 else self.ops[len(self.ops) - 15:]

def group_ops(vm, plan, pos, s, cg):
    ops = []
    for (qa, qb) in plan.get(s, []):
        for aa in range(3): ops.append(op_w(vm, qa, qb, pos, aa, cg))
    if s + 4 <= 8 and s + 4 >= 0:
        for ii in range(2): ops.append(op_x(vm, s + 4, ii))
    return ops

PRIO = os.environ.get('PRIO', '1') == '1'
S_CS = 62
VZ = 20
V_SC = 14

def conv_main(cg, t, ch):
    out = []
    for rt in range(2):
        ac = ACC + (t * 2 + rt) * 4
        if t < 4:
            p, half = divmod(t, 2)
            d = HP + (p * 2 + rt) * 4 + 2 * half
        elif ch == 0:
            d = KEEP + 2 * rt
        else:
            d = QP + 4 * rt + 2
            out.append(f"v_mov_b32 v{d-2}, v{KEEP+2*rt}")
            out.append(f"v_mov_b32 v{d-1}, v{KEEP+2*rt+1}")
        out.append(f"v_cvt_pk_bf16_f32 v{d}, v{ac}, v{ac+1}")
        out.append(f"v_cvt_pk_bf16_f32 v{d+1}, v{ac+2}, v{ac+3}")
        out.append(f"v_pk_max_i16 v{d}, v{d}, 0")
        out.append(f"v_pk_max_i16 v{d+1}, v{d+1}, 0")
    return out

def conv_extra(cg, c):
    out = []
    for rt in range(2):
        e = E + (c * 2 + rt) * 4
        if cg == 0:
            for i in range(4): out.append(f"v_mul_f32 v{e+i}, s{S_CS}, v{e+i}")
            d = QP + 4 * c + 2 * rt
        else:
            out.append(f"v_mov_b32 v{VZ+rt}, v{e}")
            for i in range(4): out.append(f"v_mul_f32 v{e+i}, v{V_SC}, v{e+i}")
            d = QP + 2 * rt
        out.append(f"v_cvt_pk_bf16_f32 v{d}, v{e}, v{e+1}")
        out.append(f"v_cvt_pk_bf16_f32 v{d+1}, v{e+2}, v{e+3}")
    return out

def h_store(vm, cg, ch, p, rt):
    def f(a):
        T = 4 * ch + (p if cg == 0 else 2 + p)
        d = HP + (p * 2 + rt) * 4
        a(f"s_add_u32 s56, s{S_HS0}, {T*8192 + rt*1024}")
        a(f"buffer_store_dwordx4 {vr(d,4)}, v{V_L16}, s[{SRD_C}:{SRD_C+3}], s56 offen"); vm.issue("st")
    return f
def h_store8(vm, rt):
    def f(a):
        a(f"s_add_u32 s56, s{S_HS0}, {8*8192 + rt*1024}")
        a(f"buffer_store_dwordx4 {vr(QP+4*rt,4)}, v{V_L16}, s[{SRD_C}:{SRD_C+3}], s56 offen"); vm.issue("st")
    return f

def row_regs(a, rt, t):
    a(f"v_and_b32 v{t}, 15, v{V_LANE}")
    a(f"v_lshrrev_b32 v{t+1}, 4, v{V_LANE}")
    a(f"s_lshl_b32 s56, s{S_RG}, 5")
    a(f"s_add_u32 s56, s56, {16*rt}")
    a(f"v_add_u32 v{t+2}, s56, v{t}")
def qbase(a):
    a(f"s_lshl_b32 s57, s{S_M}, 4")
    a(f"s_add_u32 s57, s57, s{S_N}")
    a(f"s_mul_i32 s57, s57, 12288")
    a(f"s_add_u32 s57, s57, {Q_OFF}")

def q_block0(vm, rt):
    def f(a):
        t = TD; q = f"s[{SRD_C}:{SRD_C+3}]"
        P0 = QP + 2*rt; P1 = QP + 4 + 2*rt
        row_regs(a, rt, t); qbase(a)
        a(f"v_mul_u32_u24 v{t+4}, 48, v{t+2}")
        a(f"v_lshl_add_u32 v{t+5}, v{t+1}, 3, v{t+4}")
        a(f"buffer_store_dwordx2 {vr(P0,2)}, v{t+5}, {q}, s57 offen"); vm.issue("st")
        a(f"v_add_u32 v{t+6}, 6144, v{t+5}")
        a(f"buffer_store_dword v{P1+1}, v{t+6}, {q}, s57 offen"); vm.issue("st")
        a(f"v_add_u32 v{t+6}, -4, v{t+6}")
        a(f"v_add_u32 v{t+4}, 32, v{t+4}")
        a(f"v_cmp_eq_u32 vcc, 0, v{t+1}")
        a("s_nop 1")
        a(f"v_cndmask_b32 v{t+6}, v{t+6}, v{t+4}, vcc")
        a(f"buffer_store_dword v{P1}, v{t+6}, {q}, s57 offen"); vm.issue("st")
    return f

def kv_block1(vm, rt):
    def f(a):
        t = TD; q = f"s[{SRD_C}:{SRD_C+3}]"
        P = QP + 2*rt
        OOB = 16
        row_regs(a, rt, t)
        a(f"v_mov_b32 v{OOB}, 0x7f000000")
        lend = a.newlabel("kvend")
        lk2 = a.newlabel("k2"); lv = a.newlabel("v"); lv2 = a.newlabel("v2"); lg_ = a.newlabel("gate")
        a(f"s_cmp_ge_u32 s{S_N}, 6")
        a(f"s_cbranch_scc1 {lg_}")
        a(f"s_lshl_b32 s56, s{S_M}, 7")
        a(f"v_add_u32 v{t+3}, s56, v{t+2}")
        a(f"s_cmp_ge_u32 s{S_N}, 2")
        a(f"s_cbranch_scc1 {lk2}")
        a(f"v_lshrrev_b32 v{t+4}, 5, v{t+3}")
        a(f"v_lshlrev_b32 v{t+4}, 10, v{t+4}")
        a(f"v_and_b32 v{t+5}, 31, v{t+3}")
        a(f"v_lshl_add_u32 v{t+4}, v{t+5}, 4, v{t+4}")
        a(f"v_lshl_add_u32 v{t+4}, v{t+1}, 3, v{t+4}")
        a(f"s_lshl_b32 s57, s{S_N}, 9")
        a(f"s_sub_u32 s57, s57, 16")
        a(f"v_add_u32 v{t+4}, s57, v{t+4}")
        a(f"v_cmp_le_u32 vcc, 2, v{t+1}")
        a("s_nop 1")
        a(f"v_cndmask_b32 v{t+4}, v{OOB}, v{t+4}, vcc")
        a(f"buffer_store_dwordx2 {vr(P,2)}, v{t+4}, {q}, 0 offen")
        a(f"s_branch {lend}")
        a.label(lk2)
        a(f"s_cmp_ge_u32 s{S_N}, 3")
        a(f"s_cbranch_scc1 {lv}")
        a(f"v_lshlrev_b32 v{t+4}, 2, v{t+3}")
        a(f"v_add_u32 v{t+4}, {K2_OFF}, v{t+4}")
        a(f"v_cmp_eq_u32 vcc, 3, v{t+1}")
        a("s_nop 1")
        a(f"v_cndmask_b32 v{t+4}, v{OOB}, v{t+4}, vcc")
        a(f"buffer_store_dword v{P+1}, v{t+4}, {q}, 0 offen")
        a(f"s_branch {lend}")
        a.label(lv)
        a(f"s_lshl_b32 s57, s{S_M}, 3")
        a(f"s_lshl_b32 s58, s{S_RG}, 1")
        a(f"s_add_u32 s57, s57, s58")
        a(f"s_add_u32 s57, s57, {rt}")
        a(f"s_mul_i32 s57, s57, 608")
        a(f"s_add_u32 s57, s57, {V_OFF}")
        a(f"v_bfe_u32 v{t+4}, v{t}, 2, 1")
        a(f"v_mul_u32_u24 v{t+4}, 304, v{t+4}")
        a(f"v_lshrrev_b32 v{t+5}, 3, v{t}")
        a(f"v_lshl_add_u32 v{t+4}, v{t+5}, 3, v{t+4}")
        a(f"v_and_b32 v{t+5}, 3, v{t}")
        a(f"v_lshl_add_u32 v{t+4}, v{t+5}, 1, v{t+4}")
        a(f"s_cmp_eq_u32 s{S_N}, 5")
        a(f"s_cbranch_scc1 {lv2}")
        a(f"s_sub_u32 s58, s{S_N}, 3")
        a(f"s_lshl_b32 s58, s58, 7")
        a(f"s_sub_u32 s58, s58, 128")
        a(f"v_lshl_add_u32 v{t+4}, v{t+1}, 6, v{t+4}")
        a(f"v_add_u32 v{t+4}, s58, v{t+4}")
        a(f"v_cmp_le_u32 vcc, 2, v{t+1}")
        a("s_nop 1")
        a(f"v_cndmask_b32 v{t+4}, v{OOB}, v{t+4}, vcc")
        a(f"buffer_store_short v{P}, v{t+4}, {q}, s57 offen")
        a(f"buffer_store_short_d16_hi v{P}, v{t+4}, {q}, s57 offen offset:16")
        a(f"buffer_store_short v{P+1}, v{t+4}, {q}, s57 offen offset:32")
        a(f"buffer_store_short_d16_hi v{P+1}, v{t+4}, {q}, s57 offen offset:48")
        a(f"s_branch {lend}")
        a.label(lv2)
        a(f"v_cmp_eq_u32 vcc, 3, v{t+1}")
        a("s_nop 1")
        a(f"v_cndmask_b32 v{t+5}, v{OOB}, v{t+4}, vcc")
        a(f"buffer_store_short v{P+1}, v{t+5}, {q}, s57 offen offset:256")
        a(f"buffer_store_short_d16_hi v{P+1}, v{t+5}, {q}, s57 offen offset:272")
        a(f"v_cmp_eq_u32 vcc, 2, v{t+1}")
        a(f"v_mov_b32 v17, 0x3f80")
        a("s_nop 0")
        a(f"v_cndmask_b32 v{t+5}, v{OOB}, v{t+4}, vcc")
        a(f"buffer_store_short v17, v{t+5}, {q}, s57 offen offset:288")
        a(f"s_branch {lend}")
        a.label(lg_)
        a(f"s_cmp_eq_u32 s{S_N}, {GATE_N}")
        a(f"s_cbranch_scc0 {lend}")
        z = VZ + rt
        a(f"v_mul_f32 v{z}, {hex(f32bits(-1.4426950408889634))}, v{z}")
        a(f"v_exp_f32 v{z}, v{z}")
        a(f"s_lshl_b32 s56, s{S_M}, 9")
        a(f"v_add_f32 v{z}, 1.0, v{z}")
        a(f"v_rcp_f32 v{z}, v{z}")
        a(f"s_add_u32 s56, s56, {G_OFF}")
        a(f"v_lshlrev_b32 v{t+4}, 2, v{t+2}")
        a(f"v_cmp_eq_u32 vcc, 2, v{t+1}")
        a("s_nop 1")
        a(f"v_cndmask_b32 v{t+4}, v{OOB}, v{t+4}, vcc")
        a(f"buffer_store_dword v{z}, v{t+4}, {q}, s56 offen")
        a.label(lend)
        qbase(a)
        a(f"v_mul_u32_u24 v{t+4}, 48, v{t+2}")
        a(f"v_add_u32 v{t+4}, {6144+28}, v{t+4}")
        a(f"v_cmp_eq_u32 vcc, 1, v{t+1}")
        a("s_nop 1")
        a(f"v_cndmask_b32 v{t+4}, v{OOB}, v{t+4}, vcc")
        a(f"buffer_store_dwordx2 {vr(P,2)}, v{t+4}, {q}, s57 offen"); vm.issue("st")
    return f

def passes(a, vm, cg, st, plan, pos, pend0):
    NT = 4 if cg == 0 else 5
    NE = 2 if cg == 0 else 1
    cls = ("w05",) if cg == 0 else ALLC
    lg = LG()
    a(f"s_mov_b32 s{S_CS}, {hex(f32bits(CSCALE))}")
    if cg == 1:
        a(f"v_lshrrev_b32 v15, 4, v{V_LANE}")
        a(f"v_mov_b32 v{V_SC}, 1.0")
        a(f"v_cmp_eq_u32 vcc, 1, v15")
        a(f"v_mov_b32 v15, s{S_CS}")
        a("s_nop 0")
        a(f"v_cndmask_b32 v{V_SC}, v{V_SC}, v15, vcc")
        if PRIO: a("s_setprio 1")
    wait_for(a, vm, need_pred(-1), cls)
    a("s_barrier")
    st.finev = 0
    st.fine(a, 0)
    pend = [] if NODMA else list(pend0)
    for r in x_reads(0): lg.issue(a, r, ("x", 0))
    for c in range(NE):
        for r in wx_read(0, c): lg.issue(a, r, ("e", 0, c))
    for t in range(NT):
        for r in w_read(0, pos, t, WF + 4*t): lg.issue(a, r, ("w", 0, t))
    rq = []
    deferred = []
    for j in range(18):
        passA = j < 9
        ch, sg = divmod(j, 9)
        for kk in range(2):
            q = 2*j + kk
            T = 2*sg + kk
            last = (T == 17)
            xextra = []
            if kk == 1 and j + 1 < 18:
                if not NODMA: wait_for(a, vm, need_pred(j), cls)
                if not NOBAR: a("s_barrier")
                st.fine(a, j + 1)
                if not NODMA: pend = pend + group_ops(vm, plan, pos, j, cg)
                if j + 1 <= 8: xextra = [(r, ("x", j + 1)) for r in x_reads(j + 1)]
            units = ([("e", c) for c in range(NE)] if passA else []) + [("w", t) for t in range(NT)]
            nq = q + 1
            nd = len(pend)
            take = nd if kk == 0 else (nd + 1) // 2
            my = pend[:take]; pend = pend[take:]
            if deferred and not passA:
                my = my + [deferred.pop(0)]
            nm = 2 * len(units)
            dpos = {}
            for k, d in enumerate(my):
                dpos.setdefault(min(nm, (k * nm) // max(1, len(my)) + 1), []).append(d)
            mi = 0
            cq = []
            def after_mfma():
                nonlocal mi
                mi += 1
                if rq:
                    r, tag = rq.pop(0); lg.issue(a, r, tag)
                for d in dpos.pop(mi, []): d(a)
            def flush_tag(tags):
                while any(t in tags for _, t in rq):
                    r, tag = rq.pop(0); lg.issue(a, r, tag)
            ready = []
            for ui, (kind, idx) in enumerate(units):
                tags = [("w" if kind == "w" else "e", q, idx)]
                if ui == 0 and passA: tags.append(("x", j))
                flush_tag(tags)
                lg.wait(a, tags)
                for rt in range(2):
                    if kind == "w":
                        ac = ACC + (idx * 2 + rt) * 4; af = WF + 4*idx
                    else:
                        ac = E + (idx * 2 + rt) * 4; af = WX + 4*idx
                    cin = "0" if T == 0 else vr(ac, 4)
                    a(f"v_mfma_f32_16x16x32_bf16 {vr(ac,4)}, {vr(af,4)}, {vr(XF(rt,T),4)}, {cin}")
                    after_mfma()
                    if last and ready and ready[0][0] <= ui - 3:
                        lst = ready[0][1]
                        for _ in range(min(len(lst), 6)):
                            a(lst.pop(0))
                        if not lst: ready.pop(0)
                if kind == "w":
                    if nq < 36:
                        for r in w_read(nq, pos, idx, WF + 4*idx): rq.append((r, ("w", nq, idx)))
                    if last: ready.append((ui, conv_main(cg, idx, ch)))
                else:
                    if nq < 18:
                        for r in wx_read(nq, idx): rq.append((r, ("e", nq, idx)))
                    if last: ready.append((ui, conv_extra(cg, idx)))
                if ui == 0 and xextra:
                    rq.extend(xextra)
            for k in sorted(dpos):
                for d in dpos[k]: d(a)
            if kk == 0 or last:
                while rq:
                    r, tag = rq.pop(0); lg.issue(a, r, tag)
            if last:
                st.stamp(a, f"ch{ch}")
                a("s_nop 7")
                for (_, lst) in ready:
                    for x in lst: a(x)
                a("s_nop 1")
                if ch == 0:
                    if cg == 0:
                        deferred += [q_block0(vm, 0), q_block0(vm, 1)]
                    else:
                        deferred += [kv_block1(vm, 0), kv_block1(vm, 1)]
                    deferred += [h_store(vm, cg, 0, p, rt) for p in range(2) for rt in range(2)]
                else:
                    assert not deferred
                    for p in range(2):
                        for rt in range(2): h_store(vm, cg, 1, p, rt)(a)
                    if cg == 1:
                        for rt in range(2): h_store8(vm, rt)(a)
                st.stamp(a, f"ch{ch}epi")
    assert not pend
    if PRIO and cg == 1: a("s_setprio 0")

def gen_phase_a():
    a = Asm()
    st = Stamper()
    prologue(a)
    st.stamp(a, "start")
    plan, pos = schedule()
    vm = VM(ALLC)
    setup_a1(a)
    for ii in range(2): op_x(vm, 0, ii)(a)
    setup_a2(a)
    for s in range(-4, -1):
        for (qa, qb) in plan[s]:
            for aa in range(3): op_w(vm, qa, qb, pos, aa, 1)(a)
        if s + 4 >= 1:
            for ii in range(2): op_x(vm, s + 4, ii)(a)
    setup_a3(a)
    st.stamp(a, "setup")
    l1 = a.newlabel("cg1"); lend = a.newlabel("aend")
    a(f"s_cmp_eq_u32 s{S_CG}, 1")
    a(f"s_cbranch_scc1 {l1}")
    vm0 = copy.deepcopy(vm)
    n0 = st.n
    passes(a, vm0, 0, st, plan, pos, group_ops(vm0, plan, pos, -1, 0))
    a(f"s_branch {lend}")
    a.label(l1)
    vm1 = copy.deepcopy(vm)
    st.n = n0; st.names = st.names[:n0]
    passes(a, vm1, 1, st, plan, pos, group_ops(vm1, plan, pos, -1, 1))
    a.label(lend)
    if STAMPS: a("s_waitcnt vmcnt(0)")
    st.stamp(a, "end")
    st.flush(a, 0)
    a.stamp_names = st.names
    return a
```

```python
from gen_common import *
import os
from gen_a import LG

LDS_B = 163840
MASK = os.environ.get('MASK', '0') == '1'
EXPT = os.environ.get('EXPT', '')
S_MV, S_MK = 64, 66
SCR = KV_BYTES
V_LANE = 1
V_K1A, V_K2A, V_VA = 2, 3, 4
V_G = 5
V_T = 8
Q1 = [24, 28]
Q2 = [32, 36]
S_ = [40, 56]
O_ = [72, 88]
P_ = 104
K1B = [112, 116]; K2B = [120, 124]
V0B = [128, 132]; V1B = [136, 140]
S_RQ, S_KH = S_RG, S_CG

def mfma32(d, a_, b_, c):
    if 'z' in EXPT and d in O_: a_ = 152; b_ = 156
    if 'y' in EXPT and d in S_: a_ = 152; b_ = 156
    cs = "0" if c is None else vr(c, 16)
    return f"v_mfma_f32_32x32x16_bf16 {vr(d,16)}, {vr(a_,4)}, {vr(b_,4)}, {cs}"

def kv_dma(a):
    srd(a, SRD_A, S_WS, WS_SPAN)
    a(f"v_lshlrev_b32 v{V_T}, 4, v{V_LANE}")
    for i in range(19):
        sk = None
        if i == 18:
            sk = a.newlabel("kvs")
            a(f"s_cmp_lt_u32 s{S_W}, 4")
            a(f"s_cbranch_scc0 {sk}")
        a(f"s_lshl_b32 s52, s{S_W}, 10")
        a(f"s_add_u32 s52, s52, {i*8192}")
        a(f"s_mov_b32 m0, s52")
        a(f"s_add_u32 s53, s52, {KV_OFF}")
        a(f"buffer_load_dwordx4 v{V_T}, s[{SRD_A}:{SRD_A+3}], s53 offen lds")
        if sk: a.label(sk)

def q_loads(a):
    t = V_T + 1
    q = f"s[{SRD_A}:{SRD_A+3}]"
    a(f"v_and_b32 v{t}, 31, v{V_LANE}")
    a(f"v_lshrrev_b32 v{t+1}, 5, v{V_LANE}")
    a(f"s_lshl_b32 s52, s{S_RQ}, 5")
    a(f"v_add_u32 v{t+2}, s52, v{t}")
    a(f"v_mul_u32_u24 v{t+3}, 48, v{t+2}")
    a(f"v_lshl_add_u32 v{t+4}, v{t+1}, 4, v{t+3}")
    a(f"s_lshl_b32 s53, s{S_M}, 4")
    a(f"s_add_u32 s53, s53, s{S_N}")
    a(f"s_mul_i32 s53, s53, 12288")
    a(f"s_add_u32 s53, s53, {Q_OFF}")
    for h in range(2):
        a(f"s_add_u32 s54, s53, {h*6144}")
        a(f"buffer_load_dwordx4 {vr(Q1[h],4)}, v{t+4}, {q}, s54 offen")
        a(f"buffer_load_dword v{Q2[h]}, v{t+3}, {q}, s54 offen offset:32")
    a(f"s_lshl_b32 s54, s{S_M}, 9")
    a(f"s_add_u32 s54, s54, {G_OFF}")
    a(f"v_lshlrev_b32 v{t+4}, 2, v{t+2}")
    a(f"buffer_load_dword v{V_G}, v{t+4}, {q}, s54 offen")

def addr_setup(a):
    t = V_T + 1
    a(f"v_lshlrev_b32 v{V_K1A}, 4, v{V_LANE}")
    a(f"s_lshl_b32 s52, s{S_KH}, 15")
    a(f"v_add_u32 v{V_K1A}, s52, v{V_K1A}")
    a(f"v_and_b32 v{t}, 31, v{V_LANE}")
    a(f"v_lshlrev_b32 v{V_K2A}, 2, v{t}")
    a(f"s_lshl_b32 s52, s{S_KH}, 12")
    a(f"s_add_u32 s52, s52, {K2_OFF}")
    a(f"v_add_u32 v{V_K2A}, s52, v{V_K2A}")
    a(f"v_mov_b32 v{t+1}, v{t}")
    a(f"v_add_u32 v{t+2}, -20, v{t}")
    a(f"v_cmp_le_u32 vcc, 20, v{t}")
    a("s_nop 1")
    a(f"v_cndmask_b32 v{t+1}, v{t+1}, v{t+2}, vcc")
    a(f"v_add_u32 v{t+2}, -12, v{t}")
    a(f"v_cmp_le_u32 vcc, 24, v{t}")
    a("s_nop 1")
    a(f"v_cndmask_b32 v{t+1}, v{t+1}, v{t+2}, vcc")
    a(f"v_add_u32 v{t+2}, -24, v{t}")
    a(f"v_cmp_le_u32 vcc, 28, v{t}")
    a("s_nop 1")
    a(f"v_cndmask_b32 v{t+1}, v{t+1}, v{t+2}, vcc")
    a(f"v_mov_b32 v{t+2}, 16")
    a(f"v_cmp_eq_u32 vcc, 19, v{t}")
    a("s_nop 1")
    a(f"v_cndmask_b32 v{t+1}, v{t+1}, v{t+2}, vcc")
    a(f"v_lshlrev_b32 v{t+1}, 4, v{t+1}")
    a(f"v_lshrrev_b32 v{t+2}, 5, v{V_LANE}")
    a(f"v_mul_u32_u24 v{t+2}, 304, v{t+2}")
    a(f"v_add_u32 v{V_VA}, v{t+1}, v{t+2}")
    a(f"s_mul_i32 s52, s{S_KH}, {64*608}")
    a(f"s_add_u32 s52, s52, {V_OFF}")
    a(f"v_add_u32 v{V_VA}, s52, v{V_VA}")
    if MASK:
        a(f"s_mov_b32 s{S_MV}, 0x7ffff"); a(f"s_mov_b32 s{S_MV+1}, 0x7ffff")
        a(f"s_mov_b32 s{S_MK}, -1"); a(f"s_mov_b32 s{S_MK+1}, 0")
        for b in range(2):
            for i in range(4):
                a(f"v_mov_b32 v{K2B[b]+i}, 0"); a(f"v_mov_b32 v{V0B[b]+i}, 0"); a(f"v_mov_b32 v{V1B[b]+i}, 0")
        a(f"s_mov_b64 exec, s[{S_MK}:{S_MK+1}]")
    for b in range(2):
        a(f"v_mov_b32 v{K2B[b]+1}, 0x3f803f80")
        a(f"v_mov_b32 v{K2B[b]+2}, 0x3f80")
        a(f"v_mov_b32 v{K2B[b]+3}, 0")
    if MASK: a("s_mov_b64 exec, -1")

def wave_max(a, v, tmp):
    a(f"v_mov_b32 v{tmp}, v{v}"); a("s_nop 1")
    a(f"v_permlane32_swap_b32 v{v}, v{tmp}"); a("s_nop 1")
    a(f"v_max_f32 v{v}, v{v}, v{tmp}")
    a(f"v_mov_b32 v{tmp}, v{v}"); a("s_nop 1")
    a(f"v_permlane16_swap_b32 v{v}, v{tmp}"); a("s_nop 1")
    a(f"v_max_f32 v{v}, v{v}, v{tmp}")
    for r in (8, 4, 2, 1):
        a("s_nop 1")
        a(f"v_max_f32_dpp v{v}, v{v}, v{v} row_ror:{r} row_mask:0xf bank_mask:0xf")

def kmax(a):
    t = V_T
    KT = 40
    a(f"v_lshrrev_b32 v{t+1}, 5, v0")
    a(f"v_lshlrev_b32 v{t+1}, 10, v{t+1}")
    a(f"v_and_b32 v{t+2}, 31, v0")
    a(f"v_lshl_add_u32 v{t+1}, v{t+2}, 4, v{t+1}")
    a(f"v_lshlrev_b32 v{t+2}, 2, v0")
    a(f"v_add_u32 v{t+2}, {K2_OFF}, v{t+2}")
    a(f"v_mov_b32 v{t}, 0")
    for half in range(2):
        for ii in range(2):
            i = 2*half + ii
            b = KT + 12*ii
            a(f"ds_read_b128 {vr(b,4)}, v{t+1} offset:{i*16384}")
            a(f"ds_read_b128 {vr(b+4,4)}, v{t+1} offset:{i*16384+512}")
            a(f"ds_read_b32 v{b+8}, v{t+2} offset:{i*2048}")
        a("s_waitcnt lgkmcnt(0)")
        for ii in range(2):
            b = KT + 12*ii
            a(f"v_mov_b32 v{b+9}, 0")
            for r in range(9):
                a(f"v_dot2_f32_bf16 v{b+9}, v{b+r}, v{b+r}, v{b+9}")
            a("s_nop 2")
            a(f"v_max_f32 v{t}, v{t}, v{b+9}")
    wave_max(a, t, t+3)
    a(f"s_lshl_b32 s52, s{S_W}, 2")
    a(f"s_add_u32 s52, s52, {SCR}")
    a(f"v_mov_b32 v{t+3}, s52")
    a(f"ds_write_b32 v{t+3}, v{t}")
    a("s_waitcnt lgkmcnt(0)")
    a("s_barrier")
    a(f"v_mov_b32 v{t+3}, {SCR}")
    a(f"ds_read_b128 {vr(KT,4)}, v{t+3}")
    a(f"ds_read_b128 {vr(KT+4,4)}, v{t+3} offset:16")
    a("s_waitcnt lgkmcnt(0)")
    a(f"v_max3_f32 v{t}, v{KT}, v{KT+1}, v{KT+2}")
    a(f"v_max3_f32 v{t}, v{t}, v{KT+3}, v{KT+4}")
    a(f"v_max3_f32 v{t}, v{t}, v{KT+5}, v{KT+6}")
    a(f"v_max_f32 v{t}, v{t}, v{KT+7}")

def set_m(a, h, vm_):
    t = V_T + 4
    a(f"v_cvt_pk_bf16_f32 v{t}, v{vm_}, v{vm_}")
    a(f"v_lshlrev_b32 v{t+1}, 16, v{t}")
    a(f"v_sub_f32 v{t+2}, v{vm_}, v{t+1}")
    a(f"v_cvt_pk_bf16_f32 v{t}, v{vm_}, v{t+2}")
    a(f"v_and_b32 v{t+1}, 0xffff0000, v{t}")
    a(f"v_sub_f32 v{t+2}, v{t+2}, v{t+1}")
    a(f"v_mov_b32 v{t+3}, 0")
    a(f"v_cvt_pk_bf16_f32 v{t+1}, v{t+2}, v{t+3}")
    a(f"v_cndmask_b32 v{Q2[h]+1}, v{t+3}, v{t}, vcc")
    a(f"v_cndmask_b32 v{Q2[h]+2}, v{t+3}, v{t+1}, vcc")

def q_setup(a):
    t = V_T
    a(f"v_cmp_gt_u32 vcc, 32, v{V_LANE}")
    a("s_nop 0")
    for h in range(2):
        a(f"v_mov_b32 v{t+1}, 0")
        a(f"v_cndmask_b32 v{Q2[h]}, v{t+1}, v{Q2[h]}, vcc")
        a(f"v_mov_b32 v{Q2[h]+3}, 0")
        for r in range(4):
            a(f"v_dot2_f32_bf16 v{t+1}, v{Q1[h]+r}, v{Q1[h]+r}, v{t+1}")
        a(f"v_dot2_f32_bf16 v{t+1}, v{Q2[h]}, v{Q2[h]}, v{t+1}")
        a("s_nop 2")
        a(f"v_mov_b32 v{t+2}, v{t+1}"); a("s_nop 1")
        a(f"v_permlane32_swap_b32 v{t+1}, v{t+2}"); a("s_nop 1")
        a(f"v_add_f32 v{t+1}, v{t+1}, v{t+2}")
        a(f"v_mul_f32 v{t+1}, v{t+1}, v{t}")
        a(f"v_sqrt_f32 v{t+1}, v{t+1}")
        a("s_nop 0")
        a(f"v_mul_f32 v{t+1}, {hex(f32bits(-(1.0 + 2.0**-7)))}, v{t+1}")
        set_m(a, h, t+1)

def rd_k(lg, a, t, base_tile):
    b = t % 2
    lg.issue(a, f"ds_read_b128 {vr(K1B[b],4)}, v{V_K1A} offset:{(t - base_tile)*1024}", ("k", t))
    if MASK: a(f"s_mov_b64 exec, s[{S_MK}:{S_MK+1}]")
    lg.issue(a, f"ds_read_b32 v{K2B[b]}, v{V_K2A} offset:{(t - base_tile)*128}", ("k", t))
    if MASK: a("s_mov_b64 exec, -1")
def rd_v(lg, a, t, s, base_tile):
    b = t % 2
    d = (V0B if s == 0 else V1B)[b]
    if MASK: a(f"s_mov_b64 exec, s[{S_MV}:{S_MV+1}]")
    lg.issue(a, f"ds_read_b128 {vr(d,4)}, v{V_VA} offset:{(2*(t - base_tile) + s)*608}", ("v", t, s))
    if MASK: a("s_mov_b64 exec, -1")

def exps(a, X, g, lo=0, hi=4):
    for i in range(lo, hi):
        if 'e' in EXPT: a(f"v_rcp_f32 v{144+i}, v{148+i}")
        else: a(f"v_exp_f32 v{S_[X]+4*g+i}, v{S_[X]+4*g+i}")
def cvts(a, X, g):
    for i in range(2): a(f"v_cvt_pk_bf16_f32 v{P_+2*g+i}, v{S_[X]+4*g+2*i}, v{S_[X]+4*g+2*i+1}")

def phase(a, lg, X, t, bt, NTILE, first=False):
    Y = 1 - X
    tq = t if X == 0 else t + 1
    doqk = tq < NTILE
    if doqk:
        lg.wait(a, [("k", tq)])
        a(mfma32(S_[Y], K1B[tq % 2], Q1[Y], None))
    if X == 0 and t + 1 < NTILE: rd_v(lg, a, t + 1, 0, bt)
    exps(a, X, 0)
    if doqk: a(mfma32(S_[Y], K2B[tq % 2], Q2[Y], S_[Y]))
    if X == 1:
        if t + 2 < NTILE: rd_k(lg, a, t + 2, bt)
        if t + 1 < NTILE: rd_v(lg, a, t + 1, 1, bt)
    exps(a, X, 1)
    cvts(a, X, 0)
    tp = t - 1 if X == 0 else t
    if not first:
        lg.wait(a, [("v", tp, 1)])
        a(mfma32(O_[Y], V1B[tp % 2], P_ + 4, O_[Y] if not (tp == 0 and False) else None))
    exps(a, X, 2)
    cvts(a, X, 1)
    exps(a, X, 3, 0, 2)
    lg.wait(a, [("v", t, 0)])
    a(mfma32(O_[X], V0B[t % 2], P_, O_[X]))
    exps(a, X, 3, 2, 4)
    cvts(a, X, 2)
    cvts(a, X, 3)

def main_loop(a, st):
    NT = 32; U = 4
    lg = LG()
    for X in range(2):
        for i in range(16): a(f"v_mov_b32 v{O_[X]+i}, 0")
    if EXPT:
        for i in range(144, 160): a(f"v_mov_b32 v{i}, {'1.0' if i < 152 else '0'}")
    rd_k(lg, a, 0, 0); rd_v(lg, a, 0, 0, 0); rd_k(lg, a, 1, 0); rd_v(lg, a, 0, 1, 0)
    lg.wait(a, [("k", 0)])
    a(mfma32(S_[0], K1B[0], Q1[0], None))
    a(mfma32(S_[0], K2B[0], Q2[0], S_[0]))
    a("s_nop 7"); a("s_nop 3")
    phase(a, lg, 0, 0, 0, NT, first=True)
    phase(a, lg, 1, 0, 0, NT)
    for t in range(1, U):
        phase(a, lg, 0, t, 0, NT); phase(a, lg, 1, t, 0, NT)
    def adv():
        a(f"v_add_u32 v{V_K1A}, {U*1024}, v{V_K1A}")
        a(f"v_add_u32 v{V_K2A}, {U*128}, v{V_K2A}")
        a(f"v_add_u32 v{V_VA}, {U*2*608}, v{V_VA}")
    nloop = (NT - 2*U) // U
    a(f"s_movk_i32 s60, {nloop}")
    L = a.newlabel("att"); a.label(L)
    adv()
    entry = list(lg.ops)
    for t in range(U, 2*U):
        phase(a, lg, 0, t, U, NT); phase(a, lg, 1, t, U, NT)
    shifted = [(tg[0], tg[1] - U) + tuple(tg[2:]) for tg in lg.ops]
    assert shifted == entry, (shifted, entry)
    a("s_sub_u32 s60, s60, 1")
    a("s_cmp_lg_u32 s60, 0")
    a(f"s_cbranch_scc1 {L}")
    lg.ops = [(tg[0], tg[1] + (NT - 2*U)) + tuple(tg[2:]) for tg in lg.ops]
    adv()
    for t in range(NT - U, NT):
        phase(a, lg, 0, t, NT - U, NT); phase(a, lg, 1, t, NT - U, NT)
    lg.wait(a, [("v", NT - 1, 1)])
    a("s_nop 1")
    a(mfma32(O_[1], V1B[(NT - 1) % 2], P_ + 4, O_[1]))

def epilogue(a):
    t = V_T
    q = f"s[{SRD_A}:{SRD_A+3}]"
    a("s_nop 7"); a("s_nop 7")
    a("s_barrier")
    a(f"v_lshlrev_b32 v{t}, 4, v{V_LANE}")
    a(f"s_mul_i32 s52, s{S_W}, 3072")
    a(f"v_add_u32 v{t+1}, s52, v{t}")
    a(f"s_xor_b32 s53, s{S_W}, 4")
    a(f"s_mul_i32 s53, s53, 3072")
    a(f"v_add_u32 v{t+2}, s53, v{t}")
    l1 = a.newlabel("e1"); l2 = a.newlabel("e2")
    a(f"s_cmp_eq_u32 s{S_KH}, 0")
    a(f"s_cbranch_scc0 {l1}")
    for i in range(3): a(f"ds_write_b128 v{t+1}, {vr(O_[1]+4*i,4)} offset:{i*1024}")
    a(f"s_branch {l2}")
    a.label(l1)
    for i in range(3): a(f"ds_write_b128 v{t+1}, {vr(O_[0]+4*i,4)} offset:{i*1024}")
    for i in range(12): a(f"v_mov_b32 v{O_[0]+i}, v{O_[1]+i}")
    a.label(l2)
    a("s_waitcnt lgkmcnt(0)")
    a("s_barrier")
    R = S_[0]
    for i in range(3): a(f"ds_read_b128 {vr(R+4*i,4)}, v{t+2} offset:{i*1024}")
    a("s_waitcnt lgkmcnt(0)")
    O = O_[0]
    for i in range(12): a(f"v_add_f32 v{O+i}, v{O+i}, v{R+i}")
    a(f"v_mov_b32 v{t+3}, v{O+10}")
    a(f"v_mov_b32 v{t+4}, v{O+10}"); a("s_nop 1")
    a(f"v_permlane32_swap_b32 v{t+3}, v{t+4}"); a("s_nop 1")
    a(f"v_rcp_f32 v{t+4}, v{t+3}")
    a("s_nop 0")
    a(f"v_mul_f32 v{t+4}, v{t+4}, v{V_G}")
    for i in range(10): a(f"v_mul_f32 v{O+i}, v{O+i}, v{t+4}")
    for i in range(5): a(f"v_cvt_pk_bf16_f32 v{R+i}, v{O+2*i}, v{O+2*i+1}")
    a(f"v_mov_b32 v{R+5}, 0")
    a(f"s_lshl_b32 s52, s{S_J}, 1")
    a(f"s_add_u32 s52, s52, s{S_KH}")
    a(f"s_mul_i32 s52, s52, 20")
    a(f"s_lshl_b32 s53, s{S_M}, 2")
    a(f"s_add_u32 s53, s53, s{S_KS}")
    a(f"s_mul_i32 s53, s53, {5*8192}")
    a(f"s_add_u32 s53, s53, {O_OFF}")
    a(f"v_and_b32 v{t+5}, 31, v{V_LANE}")
    a(f"v_lshrrev_b32 v{t+6}, 5, v{V_LANE}")
    a(f"s_lshl_b32 s54, s{S_RQ}, 5")
    a(f"v_add_u32 v{t+5}, s54, v{t+5}")
    a(f"v_lshrrev_b32 v{t+7}, 4, v{t+5}")
    a(f"v_lshlrev_b32 v{t+7}, 10, v{t+7}")
    a(f"v_and_b32 v{t+5}, 15, v{t+5}")
    a(f"v_lshl_add_u32 v{t+7}, v{t+5}, 4, v{t+7}")
    for i in range(3):
        a(f"v_lshlrev_b32 v{t+8}, 2, v{t+6}")
        a(f"v_add_u32 v{t+8}, {8*i}, v{t+8}")
        a(f"v_add_u32 v{t+8}, s52, v{t+8}")
        a(f"v_lshrrev_b32 v{t+9}, 5, v{t+8}")
        a(f"v_lshlrev_b32 v{t+9}, 13, v{t+9}")
        a(f"v_bfe_u32 v{t+10}, v{t+8}, 3, 2")
        a(f"v_lshl_add_u32 v{t+9}, v{t+10}, 8, v{t+9}")
        a(f"v_bfe_u32 v{t+10}, v{t+8}, 2, 1")
        a(f"v_lshl_add_u32 v{t+9}, v{t+10}, 3, v{t+9}")
        a(f"v_add_u32 v{t+9}, v{t+9}, v{t+7}")
        if i == 2:
            a(f"v_mov_b32 v{t+10}, 0x7f000000")
            a(f"v_cmp_gt_u32 vcc, 32, v{V_LANE}")
            a("s_nop 1")
            a(f"v_cndmask_b32 v{t+9}, v{t+10}, v{t+9}, vcc")
        a(f"buffer_store_dwordx2 {vr(R+2*i,2)}, v{t+9}, {q}, s53 offen")

def gen_phase_b():
    a = Asm()
    st = Stamper()
    prologue(a)
    st.stamp(a, "start")
    kv_dma(a)
    q_loads(a)
    addr_setup(a)
    a("s_waitcnt vmcnt(0)")
    a("s_barrier")
    st.stamp(a, "kvload")
    kmax(a)
    q_setup(a)
    st.stamp(a, "setup")
    main_loop(a, st)
    st.stamp(a, "loop")
    epilogue(a)
    if STAMPS: a("s_waitcnt vmcnt(0)")
    st.stamp(a, "end")
    st.flush(a, 1)
    a.stamp_names = st.names
    return a
```

```python
from gen_common import *
import os
from gen_a import LG

LDS_C = 163840
RS, R = 18432, 8
NI = 21
HD = 4
V_LANE = 1
V_WR = [2, 3, 4]
V_WD, V_WD8 = 5, 8
V_L16 = 11
V_G = 12
V_T = 14
ACC = 24
WF = 96
HB = 132
S_H, S_WM0, S_HOFF, S_KH = 64, 65, 66, S_CG

def acc(c, rt): return ACC + (c * 2 + rt) * 4
def hb(step, rt): return HB + ((step % HD) * 2 + rt) * 4

def nsteps(kh): return 21 if kh == 0 else 20

def setup(a):
    t = V_T
    srd(a, SRD_A, S_W2, 4608 * 1152)
    srd(a, SRD_B, S_WO, 576 * 1152)
    srd(a, SRD_C, S_WS, WS_SPAN)
    a(f"v_lshlrev_b32 v{V_L16}, 4, v{V_LANE}")
    a(f"s_cmp_ge_u32 s{S_W}, 3")
    a(f"s_cselect_b32 s{S_H}, 1, 0")
    a(f"s_mul_i32 s53, s{S_H}, 3")
    a(f"s_sub_u32 s53, s{S_W}, s53")
    a(f"s_min_u32 s53, s53, 2")
    a(f"s_mul_i32 s{S_WM0}, s53, 3072")
    a(f"s_mul_i32 s54, s{S_H}, 9216")
    a(f"s_add_u32 s{S_WM0}, s{S_WM0}, s54")
    a(f"s_mul_i32 s56, s53, 192")
    a(f"s_mul_i32 s54, s{S_J}, 288")
    for aa in range(3):
        a(f"s_add_u32 s52, s56, {64*aa}")
        a(f"v_add_u32 v{t+2}, s52, v{V_LANE}")
        a(f"v_mul_u32_u24 v{t+3}, 58255, v{t+2}")
        a(f"v_lshrrev_b32 v{t+3}, 20, v{t+3}")
        a(f"v_mul_u32_u24 v{t+4}, 18, v{t+3}")
        a(f"v_sub_u32 v{t+4}, v{t+2}, v{t+4}")
        a(f"v_mul_u32_u24 v{t+5}, 1152, v{t+3}")
        a(f"v_lshl_add_u32 v{t+5}, v{t+4}, 4, v{t+5}")
        a(f"v_add_u32 v{V_WD+aa}, s54, v{t+5}")
        a(f"v_mov_b32 v{t+6}, 0")
        a(f"v_mov_b32 v{t+7}, {128*1152}")
        a(f"v_cmp_le_u32 vcc, 16, v{t+3}")
        a("s_nop 1")
        a(f"v_cndmask_b32 v{t+6}, v{t+6}, v{t+7}, vcc")
        a(f"v_add_u32 v{V_WD8+aa}, v{V_WD+aa}, v{t+6}")
    a(f"v_and_b32 v{t}, 15, v{V_LANE}")
    a(f"v_lshrrev_b32 v{t+1}, 4, v{V_LANE}")
    a(f"v_lshrrev_b32 v{t+2}, 2, v{t}")
    a(f"v_lshl_add_u32 v{t+2}, v{t+1}, 2, v{t+2}")
    a(f"v_and_b32 v{t+3}, 3, v{t}")
    a(f"v_lshlrev_b32 v{t+3}, 3, v{t+3}")
    a(f"v_mul_u32_u24 v{t+4}, 288, v{t+2}")
    a(f"v_add_u32 v{V_WR[0]}, v{t+4}, v{t+3}")
    a(f"s_mul_i32 s52, s{S_KH}, 9216")
    a(f"v_add_u32 v{V_WR[0]}, s52, v{V_WR[0]}")
    a(f"v_add_u32 v{V_WR[1]}, {3*RS}, v{V_WR[0]}")
    a(f"v_add_u32 v{V_WR[2]}, {6*RS}, v{V_WR[0]}")
    a(f"s_lshl_b32 s52, s{S_M}, 4")
    a(f"s_lshl_b32 s53, s{S_KS}, 2")
    a(f"s_add_u32 s52, s52, s53")
    a(f"s_lshl_b32 s53, s{S_KH}, 1")
    a(f"s_add_u32 s52, s52, s53")
    a(f"s_mul_i32 s52, s52, 73728")
    a(f"s_lshl_b32 s53, s{S_RG}, 11")
    a(f"s_add_u32 s52, s52, s53")
    a(f"s_add_u32 s{S_HOFF}, s52, {H_OFF}")

def g_load(a, vm):
    t = V_T
    a(f"v_and_b32 v{t}, 15, v{V_LANE}")
    a(f"s_lshl_b32 s52, s{S_RG}, 5")
    a(f"v_add_u32 v{t}, s52, v{t}")
    a(f"v_lshlrev_b32 v{t}, 2, v{t}")
    a(f"s_lshl_b32 s52, s{S_M}, 9")
    a(f"s_add_u32 s52, s52, {G_OFF}")
    a(f"buffer_load_dword v{V_G}, v{t}, s[{SRD_C}:{SRD_C+3}], s52 offen"); vm.issue(("g",))
    a(f"buffer_load_dword v{V_G+1}, v{t}, s[{SRD_C}:{SRD_C+3}], s52 offen offset:64"); vm.issue(("g",))

def h_load(a, vm, kh, step):
    if step >= nsteps(kh): return
    if step < 18:
        nn, T = divmod(step, 9)
        a(f"s_add_u32 s52, s{S_HOFF}, {nn*73728 + T*8192}")
    else:
        os_ = (step - 18) + (0 if kh == 0 else 3)
        a(f"s_lshl_b32 s52, s{S_M}, 2")
        a(f"s_add_u32 s52, s52, s{S_KS}")
        a(f"s_mul_i32 s52, s52, {5*8192}")
        a(f"s_lshl_b32 s53, s{S_RG}, 11")
        a(f"s_add_u32 s52, s52, s53")
        a(f"s_add_u32 s52, s52, {O_OFF + os_*8192}")
    for rt in range(2):
        a(f"buffer_load_dwordx4 {vr(hb(step,rt),4)}, v{V_L16}, s[{SRD_C}:{SRD_C+3}], s52 offen offset:{rt*1024}")
        vm.issue(("h", step))

def w_dma_ops(vm, tau, kh):
    if tau >= NI: return []
    slot = tau % R
    ops = []
    if tau < 18:
        nn, T = divmod(tau, 9)
        base = 144*(T//4) + 32*(T % 4) if T < 8 else 128
        for aa in range(3):
            def f(a, aa=aa):
                sk = None
                if kh == 1:
                    sk = a.newlabel("wd"); a(f"s_cmp_lt_u32 s{S_W}, 6"); a(f"s_cbranch_scc0 {sk}")
                a(f"s_lshl_b32 s52, s{S_KS}, 1")
                a(f"s_add_u32 s52, s52, s{S_H}")
                a(f"s_mul_i32 s52, s52, {576*1152}")
                a(f"s_add_u32 s52, s52, {(288*nn + base)*1152}")
                a(f"s_add_u32 m0, s{S_WM0}, {slot*RS + aa*1024}")
                reg = (V_WD8 if T == 8 else V_WD) + aa
                a("s_nop 0")
                a(f"buffer_load_dwordx4 v{reg}, s[{SRD_A}:{SRD_A+3}], s52 offen lds")
                if sk: a.label(sk)
                vm.issue(("w", tau), ("dma",))
            ops.append(f)
    else:
        for aa in range(3):
            def f(a, aa=aa):
                t = V_T
                sk = a.newlabel("wd")
                if tau == 20:
                    a(f"s_cmp_lt_u32 s{S_W}, 3")
                else:
                    a(f"s_cmp_lt_u32 s{S_W}, 6")
                a(f"s_cbranch_scc0 {sk}")
                a(f"s_lshr_b32 s56, s{S_WM0}, 10")
                a(f"s_mul_i32 s53, s{S_H}, 9")
                a(f"s_sub_u32 s56, s56, s53")
                a(f"s_add_u32 s56, s56, {aa}")
                a(f"s_lshl_b32 s56, s56, 6")
                a(f"v_add_u32 v{t+2}, s56, v{V_LANE}")
                a(f"v_mul_u32_u24 v{t+3}, 58255, v{t+2}")
                a(f"v_lshrrev_b32 v{t+3}, 20, v{t+3}")
                a(f"v_mul_u32_u24 v{t+4}, 18, v{t+3}")
                a(f"v_sub_u32 v{t+4}, v{t+2}, v{t+4}")
                a(f"v_and_b32 v{t+5}, 3, v{t+3}")
                a(f"v_bfe_u32 v{t+6}, v{t+3}, 2, 2")
                a(f"v_lshl_add_u32 v{t+5}, v{t+6}, 3, v{t+5}")
                a(f"v_bfe_u32 v{t+6}, v{t+3}, 4, 1")
                a(f"v_lshl_add_u32 v{t+5}, v{t+6}, 2, v{t+5}")
                a(f"s_mul_i32 s53, s{S_H}, 96")
                a(f"s_add_u32 s53, s53, {32*(tau-18)}")
                a(f"v_add_u32 v{t+5}, s53, v{t+5}")
                a(f"v_mul_u32_u24 v{t+6}, 52429, v{t+5}")
                a(f"v_lshrrev_b32 v{t+6}, 20, v{t+6}")
                a(f"v_mul_u32_u24 v{t+7}, 20, v{t+6}")
                a(f"v_sub_u32 v{t+7}, v{t+5}, v{t+7}")
                a(f"v_min_u32 v{t+7}, 17, v{t+7}")
                a(f"v_mad_u32_u24 v{t+7}, v{t+6}, 18, v{t+7}")
                a(f"s_mul_i32 s53, s{S_KS}, 144")
                a(f"v_add_u32 v{t+7}, s53, v{t+7}")
                a(f"v_mul_u32_u24 v{t+7}, 1152, v{t+7}")
                a(f"v_lshl_add_u32 v{t+7}, v{t+4}, 4, v{t+7}")
                a(f"s_mul_i32 s53, s{S_J}, 288")
                a(f"v_add_u32 v{t+7}, s53, v{t+7}")
                a(f"s_add_u32 m0, s{S_WM0}, {slot*RS + aa*1024}")
                a("s_nop 0")
                a(f"buffer_load_dwordx4 v{t+7}, s[{SRD_B}:{SRD_B+3}], 0 offen lds")
                a.label(sk)
                if tau == 20: vm.issue_maybe(("w", tau), ("dma",))
                else: vm.issue(("w", tau), ("dma",))
            ops.append(f)
    return ops

def w_read(tau, c, dst):
    sl = tau % R
    g = sl // 3
    off = (sl - 3*g) * RS
    return [f"ds_read_b64_tr_b16 {vr(dst + 2*u, 2)}, v{V_WR[g]} offset:{off + u*4608 + c*32}" for u in range(2)]

def wait_gen(a, vm, pred, classes):
    vals = {}
    for c in classes:
        n = vm.count_after_pred(pred, c)
        if n is not None: vals[c] = min(n, 63)
    if not vals: return
    if len(set(vals.values())) == 1 and len(vals) == len(classes):
        a(f"s_waitcnt vmcnt({list(vals.values())[0]})"); return
    l2 = a.newlabel("w2"); le = a.newlabel("we")
    a(f"s_cmp_lt_u32 s{S_W}, 6")
    a(f"s_cbranch_scc0 {l2}")
    if "dma" in vals: a(f"s_waitcnt vmcnt({vals['dma']})")
    a(f"s_branch {le}")
    a.label(l2)
    if "nodma" in vals: a(f"s_waitcnt vmcnt({vals['nodma']})")
    a.label(le)

def body(a, vm, kh, st):
    cls = ("dma",) if kh == 0 else ("dma", "nodma")
    NS = nsteps(kh)
    lg = LG()
    if kh == 1: a("s_setprio 1")
    wait_gen(a, vm, lambda t: t == ("w", 0), cls)
    a("s_barrier")
    for c in range(9):
        for r in w_read(0, c, WF + 4*c): lg.issue(a, r, ("w", 0, c))
    rq = []
    for tau in range(NI):
        active = tau < NS
        def pred(t): return t == ("h", tau) or t == ("w", tau + 1)
        wait_gen(a, vm, pred, cls)
        a("s_barrier")
        st.fine(a, tau)
        pend = w_dma_ops(vm, tau + R - 1, kh)
        pend.append(lambda a, tau=tau: h_load(a, vm, kh, tau + HD) if False else None)
        pend.pop()
        if not active:
            for d in pend: d(a)
            continue
        if tau == 18:
            a("s_nop 7")
            for c in range(9):
                for rt in range(2):
                    for i in range(4):
                        a(f"v_mul_f32 v{acc(c,rt)+i}, v{acc(c,rt)+i}, v{V_G+rt}")
            a("s_nop 1")
        nm = 18; dpos = {}
        for k, d in enumerate(pend):
            dpos.setdefault(2 + (k * (nm - 4)) // max(1, len(pend)), []).append(d)
        mi = 0
        for c in range(9):
            tags = [("w", tau, c)]
            while any(t in tags for _, t in rq):
                r, tag = rq.pop(0); lg.issue(a, r, tag)
            lg.wait(a, tags)
            for rt in range(2):
                cin = "0" if tau == 0 else vr(acc(c, rt), 4)
                a(f"v_mfma_f32_16x16x32_bf16 {vr(acc(c,rt),4)}, {vr(WF+4*c,4)}, {vr(hb(tau,rt),4)}, {cin}")
                mi += 1
                if rq:
                    r, tag = rq.pop(0); lg.issue(a, r, tag)
                for d in dpos.pop(mi, []): d(a)
            if tau + 1 < NS:
                for r in w_read(tau + 1, c, WF + 4*c): rq.append((r, ("w", tau + 1, c)))
        for k in sorted(dpos):
            for d in dpos[k]: d(a)
        h_load(a, vm, kh, tau + HD)
        if tau == 0:
            pass
    while rq:
        r, tag = rq.pop(0); lg.issue(a, r, tag)
    if kh == 1: a("s_setprio 0")

def one_minus_g(a, vm, cls):
    wait_gen(a, vm, lambda t: t == ("g",), cls)
    for rt in range(2): a(f"v_sub_f32 v{V_G+rt}, 1.0, v{V_G+rt}")

def reduce_store(a, kh):
    t = V_T
    a("s_nop 7")
    a("s_waitcnt lgkmcnt(0)")
    a("s_barrier")
    a(f"s_mul_i32 s52, s{S_W}, 9216")
    a(f"v_add_u32 v{t}, s52, v{V_L16}")
    a(f"s_xor_b32 s53, s{S_W}, 4")
    a(f"s_mul_i32 s53, s53, 9216")
    a(f"v_add_u32 v{t+1}, s53, v{V_L16}")
    for c in range(9):
        a(f"ds_write_b128 v{t}, {vr(acc(c, 1-kh),4)} offset:{c*1024}")
    a("s_waitcnt lgkmcnt(0)")
    a("s_barrier")
    for c in range(9):
        a(f"ds_read_b128 {vr(WF+4*c,4)}, v{t+1} offset:{c*1024}")
    a(f"s_lshl_b32 s52, s{S_M}, 2")
    a(f"s_add_u32 s52, s52, s{S_J}")
    a(f"s_lshl_b32 s52, s52, 2")
    a(f"s_add_u32 s52, s52, s{S_KS}")
    a(f"s_lshl_b32 s52, s52, 3")
    a(f"s_lshl_b32 s53, s{S_RG}, 1")
    a(f"s_add_u32 s52, s52, s53")
    a(f"s_add_u32 s52, s52, {kh}")
    a(f"s_mul_i32 s52, s52, 9216")
    a(f"s_add_u32 s52, s52, {P_OFF}")
    for c in range(9):
        a(f"s_waitcnt lgkmcnt({8-c})")
        for i in range(4):
            a(f"v_add_f32 v{WF+4*c+i}, v{WF+4*c+i}, v{acc(c,kh)+i}")
        a(f"s_add_u32 s53, s52, {c*1024}")
        a(f"buffer_store_dwordx4 {vr(WF+4*c,4)}, v{V_L16}, s[{SRD_C}:{SRD_C+3}], s53 offen")

def gen_phase_c():
    import copy
    a = Asm(); st = Stamper(); st.finev = 0
    prologue(a)
    st.stamp(a, "start")
    setup(a)
    l1 = a.newlabel("kh1"); lend = a.newlabel("cend")
    a(f"s_cmp_eq_u32 s{S_KH}, 1")
    a(f"s_cbranch_scc1 {l1}")
    n0 = st.n
    for kh in range(2):
        if kh == 1:
            a.label(l1); st.n = n0; st.names = st.names[:n0]
        vm = VM(("dma", "nodma"))
        g_load(a, vm)
        for tau in range(R - 1):
            for d in w_dma_ops(vm, tau, kh): d(a)
            if tau < HD: h_load(a, vm, kh, tau)
        one_minus_g(a, vm, ("dma",) if kh == 0 else ("dma", "nodma"))
        st.stamp(a, "setup")
        body(a, vm, kh, st)
        st.stamp(a, "loop")
        reduce_store(a, kh)
        if kh == 0: a(f"s_branch {lend}")
    a.label(lend)
    if STAMPS: a("s_waitcnt vmcnt(0)")
    st.stamp(a, "end")
    st.flush(a, 2)
    a.stamp_names = st.names
    return a

def gen_phase_d():
    a = Asm(); st = Stamper()
    prologue(a)
    st.stamp(a, "start")
    srd(a, SRD_C, S_WS, WS_SPAN)
    srd(a, SRD_A, S_OUT, 2048 * 1152)
    a("v_lshlrev_b32 v11, 4, v1")
    a("v_and_b32 v2, 15, v1")
    a("v_lshrrev_b32 v3, 4, v1")
    for k in range(3):
        sk = a.newlabel("u")
        a(f"s_add_u32 s56, s{S_W}, {8*k}")
        if k == 2:
            a("s_cmp_lt_u32 s56, 18"); a(f"s_cbranch_scc0 {sk}")
        a("s_cmp_ge_u32 s56, 9")
        a("s_cselect_b32 s57, 1, 0")
        a("s_mul_i32 s58, s57, 9")
        a("s_sub_u32 s58, s56, s58")
        a(f"s_lshl_b32 s59, s{S_KS}, 1")
        a("s_add_u32 s59, s59, s57")
        a(f"s_lshl_b32 s52, s{S_M}, 2")
        a(f"s_add_u32 s52, s52, s{S_J}")
        a(f"s_lshl_b32 s52, s52, 5")
        a("s_add_u32 s52, s52, s59")
        a("s_mul_i32 s52, s52, 9216")
        a("s_lshl_b32 s53, s58, 10")
        a("s_add_u32 s52, s52, s53")
        a(f"s_add_u32 s52, s52, {P_OFF}")
        for p in range(4):
            a(f"buffer_load_dwordx4 {vr(16+4*p,4)}, v11, s[{SRD_C}:{SRD_C+3}], s52 offen")
            a(f"s_add_u32 s52, s52, {8*9216}")
        a(f"s_lshl_b32 s53, s{S_M}, 3")
        a("s_add_u32 s53, s53, s59")
        a("s_lshl_b32 s53, s53, 4")
        a("v_add_u32 v4, s53, v2")
        a("v_mul_u32_u24 v4, 1152, v4")
        a("v_lshl_add_u32 v4, v3, 3, v4")
        a(f"s_mul_i32 s53, s{S_J}, 288")
        a("s_lshl_b32 s54, s58, 5")
        a("s_add_u32 s53, s53, s54")
        a("s_waitcnt vmcnt(0)")
        for i in range(4):
            a(f"v_add_f32 v{16+i}, v{16+i}, v{20+i}")
            a(f"v_add_f32 v{24+i}, v{24+i}, v{28+i}")
        for i in range(4):
            a(f"v_add_f32 v{16+i}, v{16+i}, v{24+i}")
        a("v_cvt_pk_bf16_f32 v32, v16, v17")
        a("v_cvt_pk_bf16_f32 v33, v18, v19")
        a(f"buffer_store_dwordx2 v[32:33], v4, s[{SRD_A}:{SRD_A+3}], s53 offen")
        if k == 2: a.label(sk)
    if STAMPS: a("s_waitcnt vmcnt(0)")
    st.stamp(a, "end")
    st.flush(a, 3)
    a.stamp_names = st.names
    return a
```

```python
from asmlib import *
NAME = "gated_mix__grouped_kv_mqa__dense_activation_relu__prompt"
KV_OFF = 0
K1_OFF, K2_OFF, V_OFF = 0, 65536, 73728
KV_BYTES = 151552
G_OFF = 0x26000
Q_OFF = 0x30000
O_OFF = 0x400000
H_OFF = 0x800000
P_OFF = 0x2000000
WS_SPAN = 0x4000000
CSCALE = 1.4426950408889634 / (18 ** 0.5)
import struct
def f32bits(x): return struct.unpack("<I", struct.pack("<f", x))[0]

S_X, S_WQ, S_WK, S_WV, S_WO, S_W1, S_W2, S_GW, S_OUT, S_DBG, S_WS = 4, 6, 8, 10, 12, 16, 18, 20, 22, 24, 26
S_M, S_N, S_KS, S_J, S_W, S_RG, S_CG = 28, 29, 30, 31, 32, 33, 34
SRD_A, SRD_B, SRD_C, SRD_D = 36, 40, 44, 48
S_T0 = 52
class VM:
    def __init__(self, classes=("all",)):
        self.classes = classes
        self.ops = []
    def issue(self, tag, classes=None):
        self.ops.append((tag, set(classes or self.classes), True))
    def issue_maybe(self, tag, classes=None):
        self.ops.append((tag, set(classes or self.classes), False))
    def count_after_pred(self, pred, cls):
        idx = -1
        for i, (t, c, sure) in enumerate(self.ops):
            if cls in c and isinstance(t, tuple) and pred(t): idx = i
        if idx < 0: return None
        return sum(1 for (t, c, sure) in self.ops[idx + 1:] if cls in c and sure)
    def count_after(self, tags, cls):
        return self.count_after_pred(lambda t: t in tags, cls)

def srd(a, q, base_s, size, add_s=None, add_imm=0):
    a(f"s_mov_b32 s{q}, s{base_s}")
    a(f"s_mov_b32 s{q+1}, s{base_s+1}")
    if add_s is not None:
        a(f"s_add_u32 s{q}, s{q}, s{add_s}")
        a(f"s_addc_u32 s{q+1}, s{q+1}, 0")
    if add_imm:
        a(f"s_add_u32 s{q}, s{q}, {add_imm}")
        a(f"s_addc_u32 s{q+1}, s{q+1}, 0")
    a(f"s_and_b32 s{q+1}, s{q+1}, 0xffff")
    a(f"s_mov_b32 s{q+2}, {size}")
    a(f"s_mov_b32 s{q+3}, 0x20000")

def prologue(a, nwg=256):
    done = a.newlabel("go")
    a(f"s_cmp_lt_u32 s2, {nwg}")
    a(f"s_cbranch_scc1 {done}")
    a("s_endpgm")
    a.label(done)
    a("s_load_dwordx16 s[4:19], s[0:1], 0")
    a("s_load_dwordx8 s[20:27], s[0:1], 64")
    a("v_lshrrev_b32 v2, 6, v0")
    a("v_and_b32 v1, 63, v0")
    a(f"v_readfirstlane_b32 s{S_W}, v2")
    a("s_and_b32 s52, s2, 7")
    a("s_lshr_b32 s53, s2, 3")
    a(f"s_and_b32 s{S_KS}, s52, 3")
    a("s_lshr_b32 s54, s52, 2")
    a(f"s_and_b32 s{S_J}, s53, 3")
    a("s_lshr_b32 s55, s53, 2")
    a("s_lshl_b32 s54, s54, 3")
    a(f"s_add_u32 s{S_M}, s54, s55")
    a(f"s_lshl_b32 s54, s{S_KS}, 2")
    a(f"s_add_u32 s{S_N}, s54, s{S_J}")
    a(f"s_and_b32 s{S_RG}, s{S_W}, 3")
    a(f"s_lshr_b32 s{S_CG}, s{S_W}, 2")
    a("s_waitcnt lgkmcnt(0)")

def descriptor(name, vgpr=256, sgpr=102):
    return f""".section .rodata,"a"
.p2align 6
.amdhsa_kernel {name}
  .amdhsa_next_free_vgpr {vgpr}
  .amdhsa_next_free_sgpr {sgpr}
  .amdhsa_accum_offset {vgpr}
  .amdhsa_group_segment_fixed_size 0
  .amdhsa_kernarg_size 96
  .amdhsa_user_sgpr_count 2
  .amdhsa_user_sgpr_kernarg_segment_ptr 1
  .amdhsa_system_sgpr_workgroup_id_x 1
  .amdhsa_float_denorm_mode_32 3
.end_amdhsa_kernel
"""
def kernel_text(name, a):
    return f""".text
.globl {name}
.p2align 8
.type {name},@function
{name}:
""" + a.text() + "    s_endpgm\n" + descriptor(name)

import os
STAMPS = os.environ.get("STAMPS") == "1"
STAMP_OFF = 0x3E00000
class Stamper:
    def __init__(self): self.n = 0; self.names = []
    def stamp(self, a, name):
        if not STAMPS: return
        i = self.n; self.n += 1; self.names.append(name)
        assert i < 12
        a("s_memtime s[96:97]")
        a("s_memrealtime s[98:99]")
        a("s_waitcnt lgkmcnt(0)")
        a(f"s_mov_b32 s{70+2*i}, s96")
        a(f"s_mov_b32 s{71+2*i}, s98")
    def fine(self, a, idx):
        if not (STAMPS and os.environ.get("FINE") == "1"): return
        a("s_memtime s[96:97]")
        a("s_waitcnt lgkmcnt(0)")
        a(f"v_writelane_b32 v{self.finev}, s96, {idx}")
        self.nfine = max(getattr(self, "nfine", 0), idx + 1)
    def flush(self, a, kidx=0):
        if not STAMPS: return
        a("v_mov_b32 v8, 0")
        for i in range(2 * self.n):
            a(f"v_writelane_b32 v8, s{70+i}, {i}")
        srd(a, SRD_D, S_WS, WS_SPAN)
        a(f"s_lshl_b32 s52, s2, 3")
        a(f"s_add_u32 s52, s52, s{S_W}")
        a(f"s_lshl_b32 s52, s52, 7")
        a(f"s_add_u32 s52, s52, {STAMP_OFF + kidx * 0x40000}")
        a(f"v_lshlrev_b32 v9, 2, v{1}")
        a("v_cmp_gt_u32 vcc, 32, v1")
        a("s_nop 1")
        a("s_and_saveexec_b64 s[54:55], vcc")
        a(f"buffer_store_dword v8, v9, s[{SRD_D}:{SRD_D+3}], s52 offen")
        a("s_mov_b64 exec, s[54:55]")
        if os.environ.get("FINE") == "1":
            a(f"s_lshl_b32 s52, s2, 3")
            a(f"s_add_u32 s52, s52, s{S_W}")
            a(f"s_lshl_b32 s52, s52, 8")
            a(f"s_add_u32 s52, s52, {STAMP_OFF + 0x100000 + kidx * 0x80000}")
            a(f"buffer_store_dword v{self.finev}, v9, s[{SRD_D}:{SRD_D+3}], s52 offen")
```

```python
import sys
from gen_common import *
import gen_a

HEADER = """; gated_mix (MQA attention + ReLU FFN + gate) for gfx950 -- generated by dev/gen.py
"""
def build(kernels, path):
    txt = HEADER
    for (lab, a, lds, blk) in kernels:
        txt += f"; @launch kernel={lab} grid=(256,1,1) block=({blk},1,1) lds={lds}\n"
    txt += '.amdgcn_target "amdgcn-amd-amdhsa--gfx950"\n'
    for (lab, a, lds, blk) in kernels:
        probs = check_hazards(a.lines, lab)
        for p in probs[:30]: print("HAZARD", p)
        txt += kernel_text(lab, a)
    open(path, "w").write(txt)
    print("wrote", path, len(txt), "bytes")

if __name__ == "__main__":
    import os, gen_common, json
    which = sys.argv[1] if len(sys.argv) > 1 else "a"
    ks = []
    if "a" in which: ks.append(("phase_a_kernel", gen_a.gen_phase_a(), gen_a.LDS_A, 512))
    if "b" in which:
        import gen_b; ks.append(("phase_b_kernel", gen_b.gen_phase_b(), gen_b.LDS_B, 512))
    if "c" in which:
        import gen_c; ks.append(("phase_c_kernel", gen_c.gen_phase_c(), gen_c.LDS_C, 512))
    if "d" in which:
        import gen_c; ks.append(("phase_d_kernel", gen_c.gen_phase_d(), 0, 512))
    outp = sys.argv[2] if len(sys.argv) > 2 else "k.s"
    build(ks, outp)
    json.dump([getattr(k[1], "stamp_names", []) for k in ks], open(outp[:-2] + ".json", "w"))
```
